```python
import torch

def _softmax(x, axis=-1):
    return torch.softmax(x, dim=axis)
def _gelu(x):
    return torch.nn.functional.gelu(x, approximate="tanh")
def _silu(x):
    return torch.nn.functional.silu(x)
def _sigmoid(x):
    return torch.sigmoid(x)
def _layernorm(x, axis=-1, eps=1e-5):
    m = x.mean(dim=axis, keepdim=True)
    v = x.var(dim=axis, keepdim=True, unbiased=False)
    return (x - m) / torch.sqrt(v + eps)
def _scatter_add(tgt, idx, src, axis=0):
    return tgt.clone().index_add_(axis, idx, src)
def _segment_sum(src, seg, n):
    out = torch.zeros((n,) + src.shape[1:], dtype=src.dtype)
    return out.index_add_(0, seg, src)
def _pad(x, pw):
    flat = tuple(v for pair in reversed(pw) for v in pair)
    return torch.nn.functional.pad(x, flat)

kernel_name = 'interleave_layers__mha_block__dense_activation_relu__prompt'

def setup_inputs():

    _w = (lambda a: (lambda t: t.to(torch.bfloat16) if t.is_floating_point() else t)(torch.as_tensor(a)))
    def _A_setup():
        B, S, D, H = 1, 2048, 512, 32
        return {
            "x": _w((lambda *s: torch.randn(*s, dtype=torch.bfloat16) * 0.05)(B, S, D)),
            "wqkv": _w((lambda *s: torch.randn(*s, dtype=torch.bfloat16) * 0.05)(D, 3 * D)),
            "wo": _w((lambda *s: torch.randn(*s, dtype=torch.bfloat16) * 0.05)(D, D)),
        }
    _A_in = _A_setup()

    def _B_setup():
        B, S, D, Dff = 1, 2048, 512, 1792
        return {
            "x": _w((lambda *s: torch.randn(*s, dtype=torch.bfloat16) * 0.05)(B, S, D)),
            "w1": _w((lambda *s: torch.randn(*s, dtype=torch.bfloat16) * 0.05)(D, Dff)),
            "w2": _w((lambda *s: torch.randn(*s, dtype=torch.bfloat16) * 0.05)(Dff, D)),
        }
    _B_in = _B_setup()

    return {
        "A_x": _A_in["x"],
        "A_wqkv": _A_in["wqkv"],
        "A_wo": _A_in["wo"],
        "B_x": _B_in["x"],
        "B_w1": _B_in["w1"],
        "B_w2": _B_in["w2"],
    }

def reference(A_x, A_wqkv, A_wo, B_x, B_w1, B_w2):
    def _A_ref(x, wqkv, wo):
        B, S, D = x.shape
        H = 32
        Dh = D // H
        qkv = (lambda x, *d: x.permute(*d))((x @ wqkv).reshape(B, S, 3, H, Dh), 2, 0, 3, 1, 4)
        q, k, v = qkv[0], qkv[1], qkv[2]
        scores = torch.einsum("bhqd,bhkd->bhqk", q, k) * (Dh ** -0.5)
        p = _softmax(scores, axis=-1)
        o = torch.einsum("bhqk,bhkd->bhqd", p, v)
        return (lambda x, *d: x.permute(*d))(o, 0, 2, 1, 3).reshape(B, S, D) @ wo

    def _B_ref(x, w1, w2):
        h = torch.einsum("bsd,df->bsf", x, w1)
        zero = torch.zeros_like(h)
        h = torch.maximum(h, zero)
        return torch.einsum("bsf,fd->bsd", h, w2)

    x = A_x
    x = x + _A_ref(_layernorm(x, axis=-1), A_wqkv, A_wo)
    x = x + _B_ref(_layernorm(x, axis=-1), B_w1, B_w2)
    x = x + _A_ref(_layernorm(x, axis=-1), A_wqkv, A_wo)
    x = x + _B_ref(_layernorm(x, axis=-1), B_w1, B_w2)
    return x
```

```python
import sys, math

XF0  = 0x0000000
WQF  = 0x0200000
WOF  = 0x0380000
W1F  = 0x0400000
W2F  = 0x0600000
QKVF = 0x0800000
OF   = 0x0E00000
X1F  = 0x1000000
X2F  = 0x1200000
X3F  = 0x1400000
HF   = 0x1600000
ST   = [0x1D00000 + i * 0x40000 for i in range(4)]
CSQ  = 0x1E00000
CS1  = 0x1E02000
WS_SIZE = 0x2000000

QSCALE = 0.25 * math.log2(math.e)

def f2u(f):
    import struct
    return struct.unpack("<I", struct.pack("<f", f))[0]

class Asm:
    def __init__(self):
        self.lines = []
        self.vm = []
        self.maxv = 0
    def __call__(self, s):
        for l in s.split("\n"):
            l = l.strip()
            if l:
                self.lines.append("    " + l)
    def label(self, name):
        self.lines.append(name + ":")
    def c(self, s):
        self.lines.append("    ; " + s)
    def vmop(self, text, tag=None):
        self(text)
        self.vm.append(tag)
        assert len(self.vm) <= 63, "too many outstanding vm ops"
    def vmwait(self, tag, extra=""):
        tags = tag if isinstance(tag, (list, tuple, set)) else [tag]
        last = -1
        for i, t in enumerate(self.vm):
            if t in tags:
                last = i
        if last < 0:
            if extra:
                self("s_waitcnt " + extra)
            return
        n = len(self.vm) - 1 - last
        self(f"s_waitcnt vmcnt({n}) {extra}".strip())
        self.vm = self.vm[last + 1:]
    def vmwait_all(self):
        self("s_waitcnt vmcnt(0)")
        self.vm = []
    def text(self):
        return "\n".join(self.lines) + "\n"

def vr(a, n=1):
    return f"v{a}" if n == 1 else f"v[{a}:{a+n-1}]"
def sr(a, n=1):
    return f"s{a}" if n == 1 else f"s[{a}:{a+n-1}]"

kernels = []

def prologue(a, name, nwg):
    a.lines.append(f".globl {name}")
    a.lines.append(".p2align 8")
    a.lines.append(f".type {name},@function")
    a.label(name)
    a(f"s_cmp_ge_u32 s2, {nwg}")
    a(f"s_cbranch_scc1 L_{name}_end")

def ws_srd(a, d=4):
    a(f"s_load_dwordx2 s[{d}:{d+1}], s[0:1], 64")

def finish(a, name, vgpr, grid, block, lds, sgpr=96):
    a.label(f"L_{name}_end")
    a("s_endpgm")
    kernels.append((name, a.text(), vgpr, sgpr, grid, block, lds))

def srd_tail(a, d, size):
    a(f"s_and_b32 s{d+1}, s{d+1}, 0xffff")
    a(f"s_mov_b32 s{d+2}, {size}")
    a(f"s_mov_b32 s{d+3}, 0x00020000")

def gen_prep():
    name = "prep_kernel"
    a = Asm()
    prologue(a, name, 240)
    a("s_load_dwordx2 s[4:5], s[0:1], 64")
    a("s_load_dwordx2 s[8:9], s[0:1], 0")
    a("s_load_dwordx2 s[12:13], s[0:1], 8")
    a("s_load_dwordx2 s[14:15], s[0:1], 16")
    a("s_load_dwordx2 s[16:17], s[0:1], 32")
    a("s_load_dwordx2 s[18:19], s[0:1], 40")
    a("v_and_b32 v1, 63, v0")
    a("v_lshrrev_b32 v2, 6, v0")
    a("s_nop 0")
    a("v_readfirstlane_b32 s20, v2")
    a("s_waitcnt lgkmcnt(0)")
    srd_tail(a, 4, WS_SIZE)
    a("v_lshlrev_b32 v3, 4, v1")
    a("s_cmp_ge_u32 s2, 176")
    a(f"s_cbranch_scc1 L_prep_x")
    a("s_lshl_b32 s23, s20, 2")
    a("s_cmp_ge_u32 s2, 120")
    a("s_cbranch_scc1 L_prep_w2")
    a("s_cmp_ge_u32 s2, 104")
    a("s_cbranch_scc1 L_prep_wo")
    a("s_cmp_ge_u32 s2, 48")
    a("s_cbranch_scc1 L_prep_w1")
    a("s_mov_b32 s8, s12\ns_mov_b32 s9, s13")
    a(f"s_mov_b32 s10, {512*1536*2}")
    a("s_mov_b32 s21, 3072")
    a("s_mov_b32 s22, s2")
    a("s_lshl_b32 s24, s22, 15")
    a(f"s_add_u32 s24, s24, {WQF}")
    a("s_lshl_b32 s25, s22, 7")
    a(f"s_add_u32 s25, s25, {CSQ}")
    a("s_branch L_prep_wc")
    a.label("L_prep_w1")
    a("s_mov_b32 s8, s16\ns_mov_b32 s9, s17")
    a(f"s_mov_b32 s10, {512*1792*2}")
    a("s_mov_b32 s21, 3584")
    a("s_sub_u32 s22, s2, 48")
    a("s_lshl_b32 s24, s22, 15")
    a(f"s_add_u32 s24, s24, {W1F}")
    a("s_lshl_b32 s25, s22, 7")
    a(f"s_add_u32 s25, s25, {CS1}")
    a("s_branch L_prep_wc")
    a.label("L_prep_wo")
    a("s_mov_b32 s8, s14\ns_mov_b32 s9, s15")
    a(f"s_mov_b32 s10, {512*512*2}")
    a("s_mov_b32 s21, 1024")
    a("s_sub_u32 s22, s2, 104")
    a("s_lshl_b32 s24, s22, 15")
    a(f"s_add_u32 s24, s24, {WOF}")
    a("s_mov_b32 s25, 0")
    a.label("L_prep_wc")
    a("s_lshl_b32 s26, s23, 10")
    a("s_add_u32 s24, s24, s26")
    a("s_branch L_prep_wgo")
    a.label("L_prep_w2")
    a("s_mov_b32 s8, s18\ns_mov_b32 s9, s19")
    a(f"s_mov_b32 s10, {1792*512*2}")
    a("s_mov_b32 s21, 1024")
    a("s_sub_u32 s26, s2, 120")
    a("s_lshl_b32 s26, s26, 5")
    a("s_add_u32 s26, s26, s23")
    a("s_mul_i32 s22, s26, 9363")
    a("s_lshr_b32 s22, s22, 20")
    a("s_mul_i32 s27, s22, 112")
    a("s_sub_u32 s23, s26, s27")
    a("s_lshl_b32 s24, s26, 10")
    a(f"s_add_u32 s24, s24, {W2F}")
    a("s_mov_b32 s25, 0")
    for b in range(1792):
        assert (b * 9363) >> 20 == b // 112
    a.label("L_prep_wgo")
    a("s_and_b32 s9, s9, 0xffff")
    a("s_mov_b32 s11, 0x00020000")
    a("v_lshrrev_b32 v4, 2, v1")
    a("s_lshl_b32 s26, s23, 4")
    a("v_add_u32 v4, s26, v4")
    a("v_mul_lo_u32 v4, v4, s21")
    a("v_and_b32 v5, 3, v1")
    a("v_lshlrev_b32 v5, 4, v5")
    a("s_lshl_b32 s26, s22, 6")
    a("v_add3_u32 v4, v4, v5, s26")
    a("s_lshl_b32 s27, s21, 4")
    a("s_lshl_b32 s28, s20, 12")
    a("s_mov_b32 s29, 0")
    for j in range(4):
        a(f"s_add_u32 m0, s28, {j*1024}")
        a("s_nop 0")
        a(f"buffer_load_dwordx4 v4, s[8:11], s29 offen lds")
        a("s_add_u32 s29, s29, s27")
    a("v_lshrrev_b32 v6, 5, v1")
    a("v_lshlrev_b32 v6, 2, v6")
    a("v_bfe_u32 v7, v1, 2, 2")
    a("v_add_u32 v6, v6, v7")
    a("v_lshlrev_b32 v6, 6, v6")
    a("v_bfe_u32 v7, v1, 4, 1")
    a("v_lshlrev_b32 v7, 5, v7")
    a("v_add_u32 v6, v6, v7")
    a("v_and_b32 v7, 3, v1")
    a("v_lshlrev_b32 v7, 3, v7")
    a("v_add3_u32 v6, v6, v7, s28")
    a("s_waitcnt vmcnt(0)")
    for j in range(4):
        a(f"ds_read_b64_tr_b16 v[{8+4*j}:{9+4*j}], v6 offset:{j*1024}")
        a(f"ds_read_b64_tr_b16 v[{10+4*j}:{11+4*j}], v6 offset:{j*1024+512}")
    a("s_waitcnt lgkmcnt(0)")
    for j in range(4):
        a(f"buffer_store_dwordx4 v[{8+4*j}:{11+4*j}], v3, s[4:7], s24 offen offset:{j*1024}")
    a("s_cmp_eq_u32 s25, 0")
    a("s_cbranch_scc1 L_prep_kernel_end")
    a("v_mov_b32 v30, 0x3f803f80")
    a("v_mov_b32 v31, 0")
    a("s_nop 0")
    for j in range(16):
        a(f"v_dot2_f32_bf16 v31, v{8+j}, v30, v31")
    a("v_mov_b32 v32, v31")
    a("s_nop 1")
    a("v_permlane32_swap_b32 v31, v32")
    a("s_nop 1")
    a("v_add_f32 v31, v31, v32")
    a("s_lshl_b32 s26, s20, 8")
    a("s_add_u32 s26, s26, 32768")
    a("v_lshlrev_b32 v33, 2, v1")
    a("v_add_u32 v33, s26, v33")
    a("ds_write_b32 v33, v31")
    a("s_waitcnt lgkmcnt(0)")
    a("s_barrier")
    a("s_cmp_lg_u32 s20, 0")
    a("s_cbranch_scc1 L_prep_kernel_end")
    a("v_lshlrev_b32 v33, 2, v1")
    for w in range(8):
        a(f"ds_read_b32 v{34+w}, v33 offset:{32768+w*256}")
    a("s_waitcnt lgkmcnt(0)")
    for w in range(1, 8):
        a(f"v_add_f32 v34, v34, v{34+w}")
    a("v_cmp_gt_u32 vcc, 32, v1")
    a("s_and_saveexec_b64 s[30:31], vcc")
    a("buffer_store_dword v34, v33, s[4:7], s25 offen")
    a("s_branch L_prep_kernel_end")
    a.label("L_prep_x")
    srd_tail(a, 8, 2048*512*2)
    a("s_sub_u32 s22, s2, 176")
    a("v_and_b32 v4, 31, v1")
    a("s_lshl_b32 s26, s22, 5")
    a("v_add_u32 v4, s26, v4")
    a("v_lshlrev_b32 v5, 3, v4")
    a("v_lshlrev_b32 v4, 10, v4")
    a("v_lshrrev_b32 v6, 5, v1")
    a("v_lshlrev_b32 v6, 3, v6")
    a("s_lshl_b32 s26, s20, 7")
    a("v_add3_u32 v4, v4, v6, s26")
    for j in range(4):
        a(f"buffer_load_dwordx2 v[{8+4*j}:{9+4*j}], v4, s[8:11], 0 offen offset:{j*32}")
        a(f"buffer_load_dwordx2 v[{10+4*j}:{11+4*j}], v4, s[8:11], 0 offen offset:{j*32+16}")
    a("s_lshl_b32 s24, s22, 15")
    a("s_lshl_b32 s26, s20, 12")
    a("s_add_u32 s24, s24, s26")
    a(f"s_add_u32 s24, s24, {XF0}")
    a("v_mov_b32 v30, 0x3f803f80")
    a("s_waitcnt vmcnt(0)")
    for j in range(4):
        a(f"buffer_store_dwordx4 v[{8+4*j}:{11+4*j}], v3, s[4:7], s24 offen offset:{j*1024}")
    for gi in range(2):
        a(f"v_mov_b32 v{32+2*gi}, 0")
        a(f"v_mov_b32 v{33+2*gi}, 0")
    a("s_nop 0")
    for gi in range(2):
        for k in range(8):
            r = 8 + 8*gi + k
            a(f"v_dot2_f32_bf16 v{32+2*gi}, v{r}, v30, v{32+2*gi}")
            a(f"v_dot2_f32_bf16 v{33+2*gi}, v{r}, v{r}, v{33+2*gi}")
    for k in range(4):
        a(f"v_mov_b32 v{40+k}, v{32+k}")
    a("s_nop 1")
    for k in range(4):
        a(f"v_permlane32_swap_b32 v{32+k}, v{40+k}")
    a("s_nop 1")
    for k in range(4):
        a(f"v_add_f32 v{32+k}, v{32+k}, v{40+k}")
    a("s_lshl_b32 s26, s20, 15")
    a(f"s_add_u32 s26, s26, {ST[0]}")
    a("v_cmp_gt_u32 vcc, 32, v1")
    a("s_and_saveexec_b64 s[30:31], vcc")
    a("buffer_store_dwordx2 v[32:33], v5, s[4:7], s26 offen")
    a("s_add_u32 s26, s26, 16384")
    a("buffer_store_dwordx2 v[34:35], v5, s[4:7], s26 offen")
    finish(a, name, 64, 240, 512, 32768 + 2048)

def stats_issue(a, vtmp, vdst, s_rt, st_off, stmp, vlane):
    a(f"v_lshrrev_b32 v{vtmp}, 5, v{vlane}")
    a(f"v_lshlrev_b32 v{vtmp}, 17, v{vtmp}")
    a(f"v_and_b32 v{vdst}, 31, v{vlane}")
    a(f"v_lshl_add_u32 v{vtmp}, v{vdst}, 3, v{vtmp}")
    a(f"s_lshl_b32 s{stmp}, s{s_rt}, 8")
    a(f"s_add_u32 s{stmp}, s{stmp}, {st_off}")
    for i in range(8):
        a.vmop(f"buffer_load_dwordx2 v[{vdst+2*i}:{vdst+2*i+1}], v{vtmp}, s[4:7], s{stmp} offen", "stats")
        if i < 7:
            a(f"s_add_u32 s{stmp}, s{stmp}, 16384")

def stats_finish(a, vdst, vNM, vRS):
    a.vmwait("stats")
    for i in range(1, 8):
        a(f"v_add_f32 v{vdst}, v{vdst}, v{vdst+2*i}")
        a(f"v_add_f32 v{vdst+1}, v{vdst+1}, v{vdst+2*i+1}")
    a(f"v_mov_b32 v{vdst+2}, v{vdst}")
    a(f"v_mov_b32 v{vdst+3}, v{vdst+1}")
    a("s_nop 1")
    a(f"v_permlane32_swap_b32 v{vdst}, v{vdst+2}")
    a(f"v_permlane32_swap_b32 v{vdst+1}, v{vdst+3}")
    a("s_nop 1")
    a(f"v_add_f32 v{vdst}, v{vdst}, v{vdst+2}")
    a(f"v_add_f32 v{vdst+1}, v{vdst+1}, v{vdst+3}")
    a(f"v_mul_f32 v{vNM}, {f2u(-1.0/512):#x}, v{vdst}")
    a(f"v_mul_f32 v{vdst+1}, {f2u(1.0/512):#x}, v{vdst+1}")
    a(f"v_fma_f32 v{vdst+1}, -v{vNM}, v{vNM}, v{vdst+1}")
    a(f"v_max_f32 v{vdst+1}, 0, v{vdst+1}")
    a(f"v_add_f32 v{vdst+1}, {f2u(1e-5):#x}, v{vdst+1}")
    a(f"v_rsq_f32 v{vRS}, v{vdst+1}")
    a("s_nop 0")

def gen_ga(name, kind, xf, st_off):
    NT = 3 if kind == "qkv" else 4
    nwg = 256 if kind == "qkv" else 224
    wf = WQF if kind == "qkv" else W1F
    cs = CSQ if kind == "qkv" else CS1
    a = Asm()
    prologue(a, name, nwg)
    ws_srd(a)
    a("v_and_b32 v1, 63, v0")
    a("v_lshrrev_b32 v2, 6, v0")
    a("s_nop 0")
    a("v_readfirstlane_b32 s8, v2")
    a("s_and_b32 s11, s2, 7")
    a("s_lshr_b32 s12, s2, 3")
    if kind == "qkv":
        a("s_and_b32 s9, s11, 3\ns_lshl_b32 s9, s9, 2\ns_and_b32 s13, s12, 3\ns_add_u32 s9, s9, s13")
        a("s_lshr_b32 s10, s11, 2\ns_lshl_b32 s10, s10, 3\ns_lshr_b32 s13, s12, 2\ns_add_u32 s10, s10, s13")
    else:
        a("s_and_b32 s9, s11, 3\ns_lshl_b32 s9, s9, 2\ns_and_b32 s13, s12, 3\ns_add_u32 s9, s9, s13")
        a("s_lshr_b32 s10, s11, 2\ns_mul_i32 s10, s10, 7\ns_lshr_b32 s13, s12, 2\ns_add_u32 s10, s10, s13")
    a("s_lshl_b32 s14, s9, 2")
    a("s_add_u32 s14, s14, s8")
    a("v_lshlrev_b32 v2, 4, v1")
    a("v_add_u32 v3, 0x10000, v2")
    a("s_waitcnt lgkmcnt(0)")
    srd_tail(a, 4, WS_SIZE)
    VX = 16
    VACC = VX + 128
    VW = VACC + NT * 16
    VST = VW + 2 * NT * 4
    VNM = 4; VRS = 5; VT = 6
    vend = VST + 16
    stats_issue(a, VT, VST, 14, st_off, 15, 1)
    a("s_lshl_b32 s16, s14, 15")
    a(f"s_add_u32 s16, s16, {xf}")
    a(f"s_mul_i32 s17, s10, {NT*32768}")
    a("s_lshl_b32 s18, s8, 10")
    a("s_add_u32 s17, s17, s18")
    a(f"s_add_u32 s17, s17, {wf}")
    def issue_chunk(c):
        for t in range(NT):
            off = t * 32768 + c * 4096
            a(f"s_add_u32 m0, s18, {off}")
            a(f"s_add_u32 s19, s17, {off}")
            a.vmop(f"buffer_load_dwordx4 v2, s[4:7], s19 offen lds", f"c{c}")
        a(f"s_add_u32 s19, s16, {c*4096}")
        for j in range(4):
            s = 4 * c + j
            a.vmop(f"buffer_load_dwordx4 v[{VX+4*s}:{VX+4*s+3}], v2, s[4:7], s19 offen offset:{j*1024}", f"c{c}")
    npre = 7 if NT == 3 else 6
    for c in range(npre):
        issue_chunk(c)
    stats_finish(a, VST, VNM, VRS)
    nxt = npre
    def rd(s, buf):
        for t in range(NT):
            off = (t * 32 + s) * 1024
            base = 2 if off < 65536 else 3
            a(f"ds_read_b128 v[{VW+(buf*NT+t)*4}:{VW+(buf*NT+t)*4+3}], v{base} offset:{off & 0xffff}")
    for s in range(33):
        if s < 32:
            if s % 4 == 0:
                c = s // 4
                a.vmwait(f"c{c}")
                a("s_barrier")
                if nxt < 8:
                    issue_chunk(nxt); nxt += 1
            rd(s, s & 1)
        if s == 20:
            a(f"s_mul_i32 s20, s10, {NT*128}")
            a(f"s_add_u32 s20, s20, {cs}")
            a(f"v_lshrrev_b32 v{VT}, 5, v1")
            a(f"v_lshlrev_b32 v{VT}, 4, v{VT}")
            for t in range(NT):
                for q in range(4):
                    a.vmop(f"buffer_load_dwordx4 v[{VX+(t*4+q)*4}:{VX+(t*4+q)*4+3}], v{VT}, s[4:7], s20 offen offset:{t*128+q*32}", "cs")
        if s >= 1:
            p = s - 1
            a(f"s_waitcnt lgkmcnt({NT if s < 32 else 0})")
            for t in range(NT):
                wb = VW + ((p & 1) * NT + t) * 4
                cin = "0" if p == 0 else f"v[{VACC+16*t}:{VACC+16*t+15}]"
                a(f"v_mfma_f32_32x32x16_bf16 v[{VACC+16*t}:{VACC+16*t+15}], v[{wb}:{wb+3}], v[{VX+4*p}:{VX+4*p+3}], {cin}")
    a.vmwait("cs")
    if kind == "qkv":
        a(f"s_mul_i32 s21, s10, {2*NT*65536}")
        a("s_lshl_b32 s22, s14, 10")
        a("s_add_u32 s21, s21, s22")
        a(f"s_add_u32 s21, s21, {QKVF}")
        ostep = 65536
    else:
        a(f"s_mul_i32 s21, s14, {112*1024}")
        a(f"s_mul_i32 s22, s10, {2*NT*1024}")
        a("s_add_u32 s21, s21, s22")
        a(f"s_add_u32 s21, s21, {HF}")
        ostep = 1024
    a("s_nop 7")
    a("s_nop 3")
    for t in range(NT):
        if kind == "qkv":
            a(f"s_mul_i32 s23, s10, {NT}")
            a(f"s_add_u32 s23, s23, {t}")
            a("s_cmp_lt_u32 s23, 16")
            a(f"s_cselect_b32 s24, {f2u(QSCALE):#x}, 1.0")
            a(f"v_mul_f32 v{VT}, s24, v{VRS}")
            vrs = VT
        else:
            vrs = VRS
        for r in range(16):
            acc = VACC + 16 * t + r
            csr = VX + t * 16 + r
            a(f"v_fma_f32 v{acc}, v{VNM}, v{csr}, v{acc}")
        for r in range(16):
            acc = VACC + 16 * t + r
            a(f"v_mul_f32 v{acc}, v{vrs}, v{acc}")
        if kind != "qkv":
            for r in range(16):
                acc = VACC + 16 * t + r
                a(f"v_max_f32 v{acc}, 0, v{acc}")
        P = VX + 64 + t * 8
        for i in range(8):
            a(f"v_cvt_pk_bf16_f32 v{P+i}, v{VACC+16*t+2*i}, v{VACC+16*t+2*i+1}")
        for u in range(2):
            o = (2 * t + u) * ostep
            a(f"s_add_u32 s23, s21, {o}")
            a(f"buffer_store_dwordx4 v[{P+4*u}:{P+4*u+3}], v2, s[4:7], s23 offen")
    lds = NT * 32768
    finish(a, name, vend, nwg, 256, lds)

def gen_gb(name, kind, xf, resid, outf, st_out):
    KS = 32 if kind == "wo" else 112
    KQ = KS // 4
    wf = WOF if kind == "wo" else W2F
    a = Asm()
    prologue(a, name, 256)
    ws_srd(a)
    if outf is None:
        a("s_load_dwordx2 s[24:25], s[0:1], 48")
    a("v_and_b32 v1, 63, v0")
    a("v_lshrrev_b32 v2, 6, v0")
    a("s_nop 0")
    a("v_readfirstlane_b32 s8, v2")
    a("s_and_b32 s11, s2, 7\ns_lshr_b32 s12, s2, 3")
    a("s_and_b32 s9, s11, 3\ns_lshl_b32 s9, s9, 3\ns_and_b32 s13, s12, 7\ns_add_u32 s9, s9, s13")
    a("s_lshr_b32 s10, s11, 2\ns_lshl_b32 s10, s10, 2\ns_lshr_b32 s13, s12, 3\ns_add_u32 s10, s10, s13")
    a("v_lshlrev_b32 v2, 4, v1")
    a("v_mov_b32 v3, v2")
    a("s_waitcnt lgkmcnt(0)")
    srd_tail(a, 4, WS_SIZE)
    a(f"s_mul_i32 s14, s8, {KQ*1024}")
    a(f"s_mul_i32 s16, s9, {2*KS*1024}")
    a("s_add_u32 s16, s16, s14")
    a(f"s_add_u32 s16, s16, {xf}")
    a(f"s_add_u32 s17, s16, {KS*1024}")
    a(f"s_mul_i32 s18, s10, {2*KS*1024}")
    a("s_add_u32 s18, s18, s14")
    a(f"s_add_u32 s18, s18, {wf}")
    a(f"s_add_u32 s19, s18, {KS*1024}")
    D = 8
    VR = 8
    VB = 16
    VACC = VB + D * 16
    vend = VACC + 64
    a("s_lshr_b32 s20, s8, 1")
    a("s_and_b32 s21, s8, 1")
    a("s_lshl_b32 s22, s9, 1\ns_add_u32 s20, s22, s20")
    a("s_lshl_b32 s22, s10, 1\ns_add_u32 s21, s22, s21")
    a("s_lshl_b32 s22, s20, 15\ns_lshl_b32 s23, s21, 11\ns_add_u32 s22, s22, s23")
    a(f"s_add_u32 s23, s22, {resid}")
    def issue(s):
        b = VB + (s % D) * 16
        j = s % 4
        if j == 0 and s > 0:
            a("v_add_u32 v3, 0x1000, v3")
        for i, sb in enumerate((16, 17, 18, 19)):
            a.vmop(f"buffer_load_dwordx4 v[{b+4*i}:{b+4*i+3}], v3, s[4:7], s{sb} offen offset:{j*1024}", f"k{s}")
    for s in range(min(D, KQ)):
        issue(s)
    a.vmop(f"buffer_load_dwordx4 v[{VR}:{VR+3}], v2, s[4:7], s23 offen", "res")
    a.vmop(f"buffer_load_dwordx4 v[{VR+4}:{VR+7}], v2, s[4:7], s23 offen offset:1024", "res")
    for s in range(KQ):
        a.vmwait(f"k{s}")
        b = VB + (s % D) * 16
        for ai in range(2):
            for bi in range(2):
                acc = VACC + (ai * 2 + bi) * 16
                cin = "0" if s == 0 else f"v[{acc}:{acc+15}]"
                a(f"v_mfma_f32_32x32x16_bf16 v[{acc}:{acc+15}], v[{b+8+4*bi}:{b+8+4*bi+3}], v[{b+4*ai}:{b+4*ai+3}], {cin}")
        if s + D < KQ:
            issue(s + D)
    a("s_nop 7")
    a("s_nop 3")
    for w in range(4):
        a(f"s_cmp_lg_u32 s8, {w}")
        a(f"s_cbranch_scc1 L_{name}_wr{w}")
        for d in range(4):
            if d == w: continue
            j = (w - d - 1) % 4
            acc = VACC + d * 16
            for q in range(4):
                a(f"ds_write_b128 v2, v[{acc+4*q}:{acc+4*q+3}] offset:{(d*3+j)*4096 + q*1024}")
        for r in range(16):
            a(f"v_mov_b32 v{VB+r}, v{VACC+w*16+r}")
        a.label(f"L_{name}_wr{w}")
    a("s_waitcnt lgkmcnt(0)")
    a("s_barrier")
    a(f"s_mul_i32 s26, s8, {3*4096}")
    a("v_add_u32 v3, s26, v2")
    for j in range(3):
        for q in range(4):
            a(f"ds_read_b128 v[{VB+16+16*j+4*q}:{VB+16+16*j+4*q+3}], v3 offset:{j*4096+q*1024}")
    for j in range(3):
        a(f"s_waitcnt lgkmcnt({8-4*j})")
        for r in range(16):
            a(f"v_add_f32 v{VB+r}, v{VB+r}, v{VB+16+16*j+r}")
    a.vmwait("res")
    for i in range(8):
        a(f"v_lshlrev_b32 v{VB+16+2*i}, 16, v{VR+i}")
        a(f"v_and_b32 v{VB+17+2*i}, 0xffff0000, v{VR+i}")
    for r in range(16):
        a(f"v_add_f32 v{VB+r}, v{VB+r}, v{VB+16+r}")
    P = VB + 32
    for i in range(8):
        a(f"v_cvt_pk_bf16_f32 v{P+i}, v{VB+2*i}, v{VB+2*i+1}")
    if outf is not None:
        a(f"s_add_u32 s23, s22, {outf}")
        a(f"buffer_store_dwordx4 v[{P}:{P+3}], v2, s[4:7], s23 offen")
        a(f"buffer_store_dwordx4 v[{P+4}:{P+7}], v2, s[4:7], s23 offen offset:1024")
        S = VB + 48
        a(f"v_mov_b32 v{S+4}, 0x3f803f80")
        a(f"v_mov_b32 v{S}, 0")
        a(f"v_mov_b32 v{S+1}, 0")
        a("s_nop 0")
        for i in range(8):
            a(f"v_dot2_f32_bf16 v{S}, v{P+i}, v{S+4}, v{S}")
            a(f"v_dot2_f32_bf16 v{S+1}, v{P+i}, v{P+i}, v{S+1}")
        a(f"v_mov_b32 v{S+2}, v{S}")
        a(f"v_mov_b32 v{S+3}, v{S+1}")
        a("s_nop 1")
        a(f"v_permlane32_swap_b32 v{S}, v{S+2}")
        a(f"v_permlane32_swap_b32 v{S+1}, v{S+3}")
        a("s_nop 1")
        a(f"v_add_f32 v{S}, v{S}, v{S+2}")
        a(f"v_add_f32 v{S+1}, v{S+1}, v{S+3}")
        a("s_lshl_b32 s26, s21, 14\ns_lshl_b32 s27, s20, 8\ns_add_u32 s26, s26, s27")
        a(f"s_add_u32 s26, s26, {st_out}")
        a(f"v_lshlrev_b32 v{S+5}, 3, v1")
        a("v_cmp_gt_u32 vcc, 32, v1")
        a("s_and_saveexec_b64 s[28:29], vcc")
        a(f"buffer_store_dwordx2 v[{S}:{S+1}], v{S+5}, s[4:7], s26 offen")
    else:
        srd_tail(a, 24, 2048*512*2)
        a("s_nop 1")
        for q in (0, 2):
            a(f"v_permlane32_swap_b32 v{P+2*q}, v{P+2*q+2}")
            a(f"v_permlane32_swap_b32 v{P+2*q+1}, v{P+2*q+3}")
        T = VB + 48
        a(f"v_and_b32 v{T}, 31, v1")
        a(f"v_lshlrev_b32 v{T}, 10, v{T}")
        a(f"v_lshrrev_b32 v{T+1}, 5, v1")
        a(f"v_lshl_add_u32 v{T}, v{T+1}, 4, v{T}")
        a("s_lshl_b32 s28, s20, 15\ns_lshl_b32 s29, s21, 6\ns_add_u32 s28, s28, s29")
        a(f"buffer_store_dwordx4 v[{P}:{P+3}], v{T}, s[24:27], s28 offen")
        a(f"buffer_store_dwordx4 v[{P+4}:{P+7}], v{T}, s[24:27], s28 offen offset:32")
    finish(a, name, vend, 256, 256, 12 * 4096)

def gen_att(name):
    a = Asm()
    prologue(a, name, 256)
    ws_srd(a)
    a("v_and_b32 v1, 63, v0")
    a("v_lshrrev_b32 v2, 6, v0")
    a("s_nop 0")
    a("v_readfirstlane_b32 s8, v2")
    a("s_and_b32 s11, s2, 7\ns_lshr_b32 s12, s2, 3")
    a("s_lshl_b32 s9, s11, 2\ns_and_b32 s13, s12, 3\ns_add_u32 s9, s9, s13")
    a("s_lshr_b32 s10, s12, 2")
    a("s_lshl_b32 s14, s10, 3\ns_add_u32 s14, s14, s8")
    a("v_lshlrev_b32 v2, 4, v1")
    a("v_lshrrev_b32 v3, 1, v1")
    a("v_and_b32 v4, 1, v1")
    a("v_lshl_add_u32 v3, v4, 5, v3")
    a("v_lshlrev_b32 v3, 4, v3")
    a("s_waitcnt lgkmcnt(0)")
    srd_tail(a, 4, WS_SIZE)
    KL = 0; VL = 65536; ONES = 131072; UNR = 8
    VQ = 8
    a("s_lshl_b32 s15, s9, 16\ns_lshl_b32 s16, s14, 10\ns_add_u32 s15, s15, s16")
    a(f"s_add_u32 s15, s15, {QKVF}")
    a.vmop(f"buffer_load_dwordx4 v[{VQ}:{VQ+3}], v2, s[4:7], s15 offen", "q")
    a("s_lshl_b32 s16, s9, 16\ns_lshl_b32 s17, s8, 10\ns_add_u32 s16, s16, s17")
    a(f"s_add_u32 s18, s16, {QKVF + 64*65536}")
    a(f"s_add_u32 s16, s16, {QKVF + 32*65536}")
    for c in range(8):
        a(f"s_add_u32 m0, s17, {KL + c*8192}")
        a(f"s_add_u32 s19, s16, {c*8192}")
        a.vmop(f"buffer_load_dwordx4 v2, s[4:7], s19 offen lds", f"c{c}")
        a(f"s_add_u32 m0, s17, {VL + c*8192}")
        a(f"s_add_u32 s19, s18, {c*8192}")
        a.vmop(f"buffer_load_dwordx4 v3, s[4:7], s19 offen lds", f"c{c}")
    a("v_mov_b32 v4, 0x3f803f80\nv_mov_b32 v5, 0x3f803f80\nv_mov_b32 v6, 0x3f803f80\nv_mov_b32 v7, 0x3f803f80")
    a("v_lshlrev_b32 v12, 4, v0")
    a(f"v_add_u32 v12, {ONES}, v12")
    a("ds_write_b128 v12, v[4:7]")
    a("v_lshrrev_b32 v13, 5, v1\nv_lshlrev_b32 v13, 2, v13")
    a("v_bfe_u32 v4, v1, 2, 2\nv_add_u32 v13, v13, v4")
    a("v_lshlrev_b32 v13, 5, v13")
    a("v_and_b32 v4, 1, v1\nv_lshl_add_u32 v13, v4, 4, v13")
    a("v_bfe_u32 v4, v1, 1, 1\nv_lshl_add_u32 v13, v4, 3, v13")
    a(f"v_add_u32 v13, {VL}, v13")
    a("v_lshrrev_b32 v4, 5, v1\nv_xor_b32 v4, 1, v4\nv_lshlrev_b32 v4, 7, v4")
    a(f"v_add_u32 v4, {ONES}, v4")
    a("v_bfe_u32 v5, v1, 4, 1")
    a("v_cmp_eq_u32 vcc, 1, v5")
    a(f"v_mov_b32 v14, {UNR*1024}")
    a("s_nop 0")
    a("v_cndmask_b32 v13, v13, v4, vcc")
    a("v_cndmask_b32 v14, v14, 0, vcc") if False else None
    a("v_mov_b32 v6, 0")
    a("v_cndmask_b32 v14, v14, v6, vcc")
    a("v_mov_b32 v15, v2")
    VS = [16, 32]
    VP = 48
    VO = 56
    VK = [72, 76]
    VV = [80, 88]
    vend = 96
    def rdK(Tl, buf, base=15):
        a(f"ds_read_b128 v[{VK[buf]}:{VK[buf]+3}], v{base} offset:{KL + Tl*1024}")
    def rdV(Tl, buf):
        for t in range(2):
            for u in range(2):
                d = VV[buf] + 4*t + 2*u
                a(f"ds_read_b64_tr_b16 v[{d}:{d+1}], v13 offset:{Tl*1024 + t*512 + u*256}")
    a.vmwait(["q", "c0", "c1"], "lgkmcnt(0)")
    a("s_barrier")
    for r in range(16):
        a(f"v_mov_b32 v{VO+r}, 0")
    rdK(0, 0); rdK(1, 1); rdV(0, 0)
    a("s_waitcnt lgkmcnt(5)")
    a(f"v_mfma_f32_32x32x16_bf16 v[{VS[0]}:{VS[0]+15}], v[{VK[0]}:{VK[0]+3}], v[{VQ}:{VQ+3}], 0")
    a("s_mov_b32 s20, 0")
    a("s_nop 7\ns_nop 7")
    def tile(Tl, last_group_tail):
        cur = Tl & 1; nx = cur ^ 1
        S = VS[cur]; Sn = VS[nx]
        do_k2 = not (last_group_tail and Tl >= 6)
        do_s1 = not (last_group_tail and Tl == 7)
        do_v1 = do_s1
        if do_k2:
            rdK(Tl + 2, cur)
        if do_s1:
            a(f"s_waitcnt lgkmcnt({5 if do_k2 else 4})")
            a(f"v_mfma_f32_32x32x16_bf16 v[{Sn}:{Sn+15}], v[{VK[nx]}:{VK[nx]+3}], v[{VQ}:{VQ+3}], 0")
        for i in range(8):
            a(f"v_exp_f32 v{S+i}, v{S+i}")
        for i in range(4):
            a(f"v_cvt_pk_bf16_f32 v{VP+i}, v{S+2*i}, v{S+2*i+1}")
        for i in range(8, 16):
            a(f"v_exp_f32 v{S+i}, v{S+i}")
        a(f"s_waitcnt lgkmcnt({1 if do_k2 else 0})")
        a(f"v_mfma_f32_32x32x16_bf16 v[{VO}:{VO+15}], v[{VV[cur]}:{VV[cur]+3}], v[{VP}:{VP+3}], v[{VO}:{VO+15}]")
        if do_v1:
            if Tl == 7:
                a("v_add_u32 v13, v13, v14")
                rdV(0, nx)
            else:
                rdV(Tl + 1, nx)
        for i in range(4, 8):
            a(f"v_cvt_pk_bf16_f32 v{VP+i}, v{S+2*i}, v{S+2*i+1}")
        a("s_nop 1")
        a(f"v_mfma_f32_32x32x16_bf16 v[{VO}:{VO+15}], v[{VV[cur]+4}:{VV[cur]+7}], v[{VP+4}:{VP+7}], v[{VO}:{VO+15}]")
    for Tl in range(8):
        if Tl == 6:
            pass
        tile(Tl, False)
    a("v_add_u32 v15, 0x2000, v15")
    a.vmwait_all()
    a("s_barrier")
    a("s_mov_b32 s20, 6")
    a.label(f"L_{name}_loop")
    for Tl in range(8):
        tile(Tl, False)
    a("v_add_u32 v15, 0x2000, v15")
    a("s_sub_u32 s20, s20, 1")
    a("s_cmp_lg_u32 s20, 0")
    a(f"s_cbranch_scc1 L_{name}_loop")
    for Tl in range(8):
        tile(Tl, True)
    a("s_nop 7\ns_nop 7")
    a(f"v_rcp_f32 v4, v{VO+8}")
    a("s_nop 0")
    for r in range(8):
        a(f"v_mul_f32 v{VO+r}, v4, v{VO+r}")
    for i in range(4):
        a(f"v_cvt_pk_bf16_f32 v{VP+i}, v{VO+2*i}, v{VO+2*i+1}")
    a("s_lshl_b32 s15, s14, 15\ns_lshl_b32 s16, s9, 10\ns_add_u32 s15, s15, s16")
    a(f"s_add_u32 s15, s15, {OF}")
    a(f"buffer_store_dwordx4 v[{VP}:{VP+3}], v2, s[4:7], s15 offen")
    finish(a, name, vend, 256, 512, 131072 + 8192)

def build(sel=None):
    gen_prep()
    gen_ga("qkv1_kernel", "qkv", XF0, ST[0])
    gen_att("att1_kernel")
    gen_gb("wo1_kernel", "wo", OF, XF0, X1F, ST[1])
    gen_ga("ffa1_kernel", "w1", X1F, ST[1])
    gen_gb("ffb1_kernel", "w2", HF, X1F, X2F, ST[2])
    gen_ga("qkv2_kernel", "qkv", X2F, ST[2])
    gen_att("att2_kernel")
    gen_gb("wo2_kernel", "wo", OF, X2F, X3F, ST[3])
    gen_ga("ffa2_kernel", "w1", X3F, ST[3])
    gen_gb("ffb2_kernel", "w2", HF, X3F, None, None)
    hdr = open("header.txt").read()
    s = hdr
    for (name, text, vg, sg, grid, block, lds) in kernels:
        s += f"; @launch kernel={name} grid=({grid},1,1) block=({block},1,1) lds={lds}\n"
    s += '.amdgcn_target "amdgcn-amd-amdhsa--gfx950"\n.text\n'
    for (name, text, vg, sg, grid, block, lds) in kernels:
        s += text + "\n"
    s += '.section .rodata,"a"\n'
    for (name, text, vg, sg, grid, block, lds) in kernels:
        vga = (vg + 3) // 4 * 4
        s += f""".p2align 6
.amdhsa_kernel {name}
  .amdhsa_next_free_vgpr {vga}
  .amdhsa_next_free_sgpr {sg}
  .amdhsa_accum_offset {vga}
  .amdhsa_group_segment_fixed_size 0
  .amdhsa_kernarg_size 72
  .amdhsa_user_sgpr_count 2
  .amdhsa_user_sgpr_kernarg_segment_ptr 1
  .amdhsa_system_sgpr_workgroup_id_x 1
  .amdhsa_float_denorm_mode_32 3
.end_amdhsa_kernel
"""
    return s

if __name__ == "__main__":
    out = sys.argv[1] if len(sys.argv) > 1 else "out.s"
    open(out, "w").write(build())
```

```python
import sys, math, struct

MB = 1 << 20
XF   = [0 * MB, 2 * MB, 4 * MB, 6 * MB]
WQF  = 8 * MB
WOF  = WQF + 0x180000
W1F  = 10 * MB
W2F  = 12 * MB
QKVF = 14 * MB
OF   = 26 * MB
HF   = 30 * MB
STB  = 46 * MB
ST_STRIDE = 0x80000
CSQ  = 48 * MB
CS1  = CSQ + 0x2000
FLG  = 49 * MB
PROF_WS = 50 * MB
WS_SIZE = 56 * MB
QSCALE = 0.25 * math.log2(math.e)
PROF = False
NAME = "interleave_layers__mha_block__dense_activation_relu__prompt_kernel"
SPIN_MAX = 1 << 18

def f2u(f): return struct.unpack("<I", struct.pack("<f", f))[0]

class Asm:
    def __init__(self):
        self.lines = []; self.vm = []; self.uid = 0
    def __call__(self, s):
        for l in s.split("\n"):
            l = l.strip()
            if l: self.lines.append("    " + l)
    def label(self, name): self.lines.append(name + ":")
    def newlabel(self, base):
        self.uid += 1
        return f"L_{base}_{self.uid}"
    def c(self, s): self.lines.append("    ; " + s)
    def vmop(self, text, tag=None):
        self(text); self.vm.append(tag)
        assert len(self.vm) <= 63, "too many outstanding vm ops"
    def vmwait(self, tag, extra=""):
        tags = tag if isinstance(tag, (list, tuple, set)) else [tag]
        last = -1
        for i, t in enumerate(self.vm):
            if t in tags: last = i
        if last < 0:
            if extra: self("s_waitcnt " + extra)
            return
        n = len(self.vm) - 1 - last
        self(f"s_waitcnt vmcnt({n}) {extra}".strip())
        self.vm = self.vm[last + 1:]
    def vmwait_all(self, extra=""):
        self(f"s_waitcnt vmcnt(0) {extra}".strip()); self.vm = []
    def vmreset(self): self.vm = []
    def text(self): return "\n".join(self.lines) + "\n"

S_WG = 2; S_WAVE = 8; S_NONCE = 9; S_L = 10; S_X = 11; S_I = 12
SYNCW = 7

def stamp(a, i):
    if not PROF: return
    a("s_memrealtime s[68:69]")
    a("s_waitcnt lgkmcnt(0)")
    a(f"s_lshl_b32 s66, s{S_L}, 4")
    a(f"s_add_u32 s66, s66, {i}")
    a("s_lshl_b32 s66, s66, 2")
    a(f"s_lshl_b32 s67, s{S_WG}, 11")
    a("s_add_u32 s66, s66, s67")
    a(f"s_lshl_b32 s67, s{S_WAVE}, 8")
    a("s_add_u32 s66, s66, s67")
    a(f"s_add_u32 s66, s66, {PROF_WS}")
    a("v_mov_b32 v250, s68")
    a("v_mov_b32 v251, 0")
    a("s_mov_b64 s[64:65], exec")
    a("s_mov_b64 exec, 1")
    a("buffer_store_dword v250, v251, s[4:7], s66 offen")
    a("s_mov_b64 exec, s[64:65]")
    a.vm.append("prof")

def set_exec(a, nl):
    mask = (1 << nl) - 1
    a(f"s_mov_b32 exec_lo, {hex(mask & 0xffffffff)}")
    a(f"s_mov_b32 exec_hi, {hex(mask >> 32)}")

def phase_id(a, dst, k):
    a(f"s_mul_i32 s{dst}, s{S_L}, 5")
    a(f"s_add_u32 s{dst}, s{dst}, {1 + k}")

def signal(a, k, prep=False):
    a.vmwait_all()
    a("s_barrier")
    l = a.newlabel("sig")
    a(f"s_cmp_lg_u32 s{S_WAVE}, {SYNCW}")
    a(f"s_cbranch_scc1 {l}")
    if prep: a("s_mov_b32 s20, 0")
    else: phase_id(a, 20, k)
    a(f"s_add_u32 s21, s{S_NONCE}, s20")
    a(f"s_lshl_b32 s20, s20, 8")
    a(f"s_add_u32 s20, s20, s{S_WG}")
    a(f"s_lshl_b32 s20, s20, 7")
    a(f"s_add_u32 s20, s20, {FLG}")
    a("v_mov_b32 v4, s21")
    a("v_mov_b32 v5, 0")
    a("s_mov_b64 exec, 1")
    a("buffer_store_dword v4, v5, s[4:7], s20 offen sc1")
    a("s_mov_b64 exec, -1")
    a.label(l)

def poll(a, nlanes, phase_sreg, per=1):
    lp = a.newlabel("poll"); ld = a.newlabel("polld")
    a(f"s_add_u32 s21, s{S_NONCE}, s{phase_sreg}")
    a(f"s_lshl_b32 s20, s{phase_sreg}, 15")
    a(f"s_add_u32 s20, s20, {FLG}")
    a("v_lshlrev_b32 v4, 7, v4")
    set_exec(a, nlanes)
    a("s_mov_b32 s22, 0")
    a.label(lp)
    for p in range(per):
        if p * 8192 < 4096 or p == 0:
            a(f"buffer_load_dword v{5+p}, v4, s[4:7], s20 offen sc1")
        else:
            a(f"s_add_u32 s23, s20, {p*8192}")
            a(f"buffer_load_dword v{5+p}, v4, s[4:7], s23 offen sc1")
    a("s_waitcnt vmcnt(0)")
    a("v_cmp_ne_u32 vcc, s21, v5")
    for p in range(1, per):
        a(f"v_cmp_ne_u32 s[24:25], s21, v{5+p}")
        if p == 3:
            a("s_and_b32 s25, s25, 0xffff")
        a("s_or_b64 vcc, vcc, s[24:25]")
    a("s_cmp_eq_u64 vcc, 0")
    a(f"s_cbranch_scc1 {ld}")
    a("s_sleep 1")
    a("s_add_u32 s22, s22, 1")
    a(f"s_cmp_lt_u32 s22, {SPIN_MAX}")
    a(f"s_cbranch_scc1 {lp}")
    a.label(ld)
    a("s_mov_b64 exec, -1")

def inv_ga_qkv(a, vmb, vnb):
    a(f"v_lshrrev_b32 v6, 2, v{vmb}\nv_lshrrev_b32 v7, 3, v{vnb}\nv_lshl_add_u32 v6, v7, 2, v6")
    a(f"v_and_b32 v7, 7, v{vnb}\nv_lshlrev_b32 v7, 2, v7\nv_and_b32 v4, 3, v{vmb}\nv_add_u32 v7, v7, v4")
    a("v_lshl_add_u32 v4, v7, 3, v6")
def inv_ga_w1(a, vmb, vnb):
    a(f"v_cmp_le_u32 vcc, 7, v{vnb}\nv_mov_b32 v7, 0\ns_nop 0\nv_cndmask_b32 v7, v7, 1, vcc" if False else
      f"v_cmp_le_u32 vcc, 7, v{vnb}\nv_mov_b32 v7, 0\nv_mov_b32 v6, 1\nv_cndmask_b32 v7, v7, v6, vcc")
    a(f"v_mul_u32_u24 v6, 7, v7\nv_sub_u32 v6, v{vnb}, v6")
    a(f"v_lshlrev_b32 v6, 2, v6\nv_and_b32 v4, 3, v{vmb}\nv_add_u32 v6, v6, v4")
    a(f"v_lshrrev_b32 v4, 2, v{vmb}\nv_lshl_add_u32 v4, v7, 2, v4")
    a("v_lshl_add_u32 v4, v6, 3, v4")
def inv_gb(a, vmb, vnb):
    a(f"v_lshrrev_b32 v6, 3, v{vmb}\nv_lshrrev_b32 v7, 2, v{vnb}\nv_lshl_add_u32 v6, v7, 2, v6")
    a(f"v_and_b32 v7, 3, v{vnb}\nv_lshlrev_b32 v7, 3, v7\nv_and_b32 v4, 7, v{vmb}\nv_add_u32 v7, v7, v4")
    a("v_lshl_add_u32 v4, v7, 3, v6")
def inv_att(a, vh, vqb):
    a(f"v_and_b32 v6, 3, v{vh}\nv_lshl_add_u32 v6, v{vqb}, 2, v6\nv_lshrrev_b32 v7, 2, v{vh}\nv_lshl_add_u32 v4, v6, 3, v7")

def if_wave(a, cond, val, body, base="w"):
    l = a.newlabel(base)
    inv = {"eq": "lg", "lt": "ge", "ge": "lt", "lg": "eq"}[cond]
    a(f"s_cmp_{inv}_u32 s{S_WAVE}, {val}")
    a(f"s_cbranch_scc1 {l}")
    body()
    a.label(l)

def gen_prep(a):
    a.c("================ PREP ================")
    lend = a.newlabel("prep_end"); lx = a.newlabel("prep_x"); lw2 = a.newlabel("prep_w2"); lwo = a.newlabel("prep_wo")
    lw1 = a.newlabel("prep_w1"); lwc = a.newlabel("prep_wc"); lgo = a.newlabel("prep_go")
    a(f"s_cmp_ge_u32 s{S_WG}, 240")
    a(f"s_cbranch_scc1 {lend}")
    a("s_load_dwordx2 s[16:17], s[0:1], 0")
    a("s_load_dwordx2 s[28:29], s[0:1], 8")
    a("s_load_dwordx2 s[30:31], s[0:1], 16")
    a("s_load_dwordx2 s[32:33], s[0:1], 32")
    a("s_load_dwordx2 s[34:35], s[0:1], 40")
    a("s_waitcnt lgkmcnt(0)")
    a(f"s_cmp_ge_u32 s{S_WG}, 176")
    a(f"s_cbranch_scc1 {lx}")
    a(f"s_lshl_b32 s23, s{S_WAVE}, 2")
    a(f"s_cmp_ge_u32 s{S_WG}, 120\ns_cbranch_scc1 {lw2}")
    a(f"s_cmp_ge_u32 s{S_WG}, 104\ns_cbranch_scc1 {lwo}")
    a(f"s_cmp_ge_u32 s{S_WG}, 48\ns_cbranch_scc1 {lw1}")
    a("s_mov_b32 s16, s28\ns_mov_b32 s17, s29")
    a(f"s_mov_b32 s18, {512*1536*2}\ns_mov_b32 s21, 3072\ns_mov_b32 s22, s{S_WG}")
    a(f"s_lshl_b32 s24, s22, 15\ns_add_u32 s24, s24, {WQF}\ns_lshl_b32 s25, s22, 7\ns_add_u32 s25, s25, {CSQ}")
    a(f"s_branch {lwc}")
    a.label(lw1)
    a("s_mov_b32 s16, s32\ns_mov_b32 s17, s33")
    a(f"s_mov_b32 s18, {512*1792*2}\ns_mov_b32 s21, 3584\ns_sub_u32 s22, s{S_WG}, 48")
    a(f"s_lshl_b32 s24, s22, 15\ns_add_u32 s24, s24, {W1F}\ns_lshl_b32 s25, s22, 7\ns_add_u32 s25, s25, {CS1}")
    a(f"s_branch {lwc}")
    a.label(lwo)
    a("s_mov_b32 s16, s30\ns_mov_b32 s17, s31")
    a(f"s_mov_b32 s18, {512*512*2}\ns_mov_b32 s21, 1024\ns_sub_u32 s22, s{S_WG}, 104")
    a(f"s_lshl_b32 s24, s22, 15\ns_add_u32 s24, s24, {WOF}\ns_mov_b32 s25, 0")
    a.label(lwc)
    a("s_lshl_b32 s26, s23, 10\ns_add_u32 s24, s24, s26")
    a(f"s_branch {lgo}")
    a.label(lw2)
    a("s_mov_b32 s16, s34\ns_mov_b32 s17, s35")
    a(f"s_mov_b32 s18, {1792*512*2}\ns_mov_b32 s21, 1024\ns_sub_u32 s26, s{S_WG}, 120")
    a("s_lshl_b32 s26, s26, 5\ns_add_u32 s26, s26, s23")
    a("s_mul_i32 s22, s26, 9363\ns_lshr_b32 s22, s22, 20\ns_mul_i32 s27, s22, 112\ns_sub_u32 s23, s26, s27")
    a(f"s_lshl_b32 s24, s26, 10\ns_add_u32 s24, s24, {W2F}\ns_mov_b32 s25, 0")
    a.label(lgo)
    a("s_and_b32 s17, s17, 0xffff\ns_mov_b32 s19, 0x00020000")
    a("v_lshrrev_b32 v4, 2, v1\ns_lshl_b32 s26, s23, 4\nv_add_u32 v4, s26, v4\nv_mul_lo_u32 v4, v4, s21")
    a("v_and_b32 v5, 3, v1\nv_lshlrev_b32 v5, 4, v5\ns_lshl_b32 s26, s22, 6\nv_add3_u32 v4, v4, v5, s26")
    a(f"s_lshl_b32 s27, s21, 4\ns_lshl_b32 s28, s{S_WAVE}, 12\ns_mov_b32 s29, 0")
    for j in range(4):
        a(f"s_add_u32 m0, s28, {j*1024}\ns_nop 0")
        a(f"buffer_load_dwordx4 v4, s[16:19], s29 offen lds")
        a("s_add_u32 s29, s29, s27")
    a("v_lshrrev_b32 v6, 5, v1\nv_lshlrev_b32 v6, 2, v6\nv_bfe_u32 v7, v1, 2, 2\nv_add_u32 v6, v6, v7\nv_lshlrev_b32 v6, 6, v6")
    a("v_bfe_u32 v7, v1, 4, 1\nv_lshlrev_b32 v7, 5, v7\nv_add_u32 v6, v6, v7\nv_and_b32 v7, 3, v1\nv_lshlrev_b32 v7, 3, v7\nv_add3_u32 v6, v6, v7, s28")
    a("s_waitcnt vmcnt(0)")
    for j in range(4):
        a(f"ds_read_b64_tr_b16 v[{8+4*j}:{9+4*j}], v6 offset:{j*1024}")
        a(f"ds_read_b64_tr_b16 v[{10+4*j}:{11+4*j}], v6 offset:{j*1024+512}")
    a("s_waitcnt lgkmcnt(0)")
    for j in range(4):
        a(f"buffer_store_dwordx4 v[{8+4*j}:{11+4*j}], v2, s[4:7], s24 offen offset:{j*1024} sc1")
    a(f"s_cmp_eq_u32 s25, 0\ns_cbranch_scc1 {lend}")
    a("v_mov_b32 v30, 0x3f803f80\nv_mov_b32 v31, 0\ns_nop 0")
    for j in range(16): a(f"v_dot2_f32_bf16 v31, v{8+j}, v30, v31")
    a("v_mov_b32 v32, v31\ns_nop 1\nv_permlane32_swap_b32 v31, v32\ns_nop 1\nv_add_f32 v31, v31, v32")
    a(f"s_lshl_b32 s26, s{S_WAVE}, 8\ns_add_u32 s26, s26, 32768\nv_lshlrev_b32 v33, 2, v1\nv_add_u32 v33, s26, v33")
    a("ds_write_b32 v33, v31\ns_waitcnt lgkmcnt(0)\ns_barrier")
    a(f"s_cmp_lg_u32 s{S_WAVE}, 0\ns_cbranch_scc1 {lend}")
    a("v_lshlrev_b32 v33, 2, v1")
    for w in range(8): a(f"ds_read_b32 v{34+w}, v33 offset:{32768+w*256}")
    a("s_waitcnt lgkmcnt(0)")
    for w in range(1, 8): a(f"v_add_f32 v34, v34, v{34+w}")
    set_exec(a, 32)
    a("buffer_store_dword v34, v33, s[4:7], s25 offen sc1")
    a("s_mov_b64 exec, -1")
    a(f"s_branch {lend}")
    a.label(lx)
    a(f"s_and_b32 s17, s17, 0xffff\ns_mov_b32 s18, {2048*512*2}\ns_mov_b32 s19, 0x00020000")
    a(f"s_sub_u32 s22, s{S_WG}, 176")
    a("v_and_b32 v4, 31, v1\ns_lshl_b32 s26, s22, 5\nv_add_u32 v4, s26, v4\nv_lshlrev_b32 v5, 3, v4\nv_lshlrev_b32 v4, 10, v4")
    a(f"v_lshrrev_b32 v6, 5, v1\nv_lshlrev_b32 v6, 3, v6\ns_lshl_b32 s26, s{S_WAVE}, 7\nv_add3_u32 v4, v4, v6, s26")
    for j in range(4):
        a(f"buffer_load_dwordx2 v[{8+4*j}:{9+4*j}], v4, s[16:19], 0 offen offset:{j*32}")
        a(f"buffer_load_dwordx2 v[{10+4*j}:{11+4*j}], v4, s[16:19], 0 offen offset:{j*32+16}")
    a(f"s_lshl_b32 s24, s22, 15\ns_lshl_b32 s26, s{S_WAVE}, 12\ns_add_u32 s24, s24, s26\ns_add_u32 s24, s24, {XF[0]}")
    a("v_mov_b32 v30, 0x3f803f80")
    a("s_waitcnt vmcnt(0)")
    for j in range(4):
        a(f"buffer_store_dwordx4 v[{8+4*j}:{11+4*j}], v2, s[4:7], s24 offen offset:{j*1024} sc1")
    for j in range(4): a(f"v_mov_b32 v{32+2*j}, 0\nv_mov_b32 v{33+2*j}, 0")
    a("s_nop 0")
    for j in range(4):
        for k in range(4):
            r = 8 + 4*j + k
            a(f"v_dot2_f32_bf16 v{32+2*j}, v{r}, v30, v{32+2*j}")
            a(f"v_dot2_f32_bf16 v{33+2*j}, v{r}, v{r}, v{33+2*j}")
    for k in range(8): a(f"v_mov_b32 v{40+k}, v{32+k}")
    a("s_nop 1")
    for k in range(8): a(f"v_permlane32_swap_b32 v{32+k}, v{40+k}")
    a("s_nop 1")
    for k in range(8): a(f"v_add_f32 v{32+k}, v{32+k}, v{40+k}")
    a(f"s_lshl_b32 s26, s{S_WAVE}, 16\ns_add_u32 s26, s26, {STB}")
    set_exec(a, 32)
    for j in range(4):
        a(f"buffer_store_dwordx2 v[{32+2*j}:{33+2*j}], v5, s[4:7], s26 offen sc1")
        if j < 3: a("s_add_u32 s26, s26, 16384")
    a("s_mov_b64 exec, -1")
    a.label(lend)
    signal(a, 0, prep=True)

def stats_issue(a, ng, vtmp, vdst, s_rt, s_st, stmp):
    h = ng // 2
    a(f"v_lshrrev_b32 v{vtmp}, 5, v1")
    a(f"v_mul_u32_u24 v{vtmp}, {h*16384}, v{vtmp}")
    a(f"v_and_b32 v{vdst}, 31, v1")
    a(f"v_lshl_add_u32 v{vtmp}, v{vdst}, 3, v{vtmp}")
    a(f"s_lshl_b32 s{stmp}, s{s_rt}, 8")
    a(f"s_add_u32 s{stmp}, s{stmp}, s{s_st}")
    for i in range(h):
        a.vmop(f"buffer_load_dwordx2 v[{vdst+2*i}:{vdst+2*i+1}], v{vtmp}, s[4:7], s{stmp} offen", "stats")
        if i < h - 1: a(f"s_add_u32 s{stmp}, s{stmp}, 16384")

def stats_finish(a, ng, vdst, vNM, vRS):
    h = ng // 2
    a.vmwait("stats")
    for i in range(1, h):
        a(f"v_add_f32 v{vdst}, v{vdst}, v{vdst+2*i}")
        a(f"v_add_f32 v{vdst+1}, v{vdst+1}, v{vdst+2*i+1}")
    a(f"v_mov_b32 v{vdst+2}, v{vdst}\nv_mov_b32 v{vdst+3}, v{vdst+1}\ns_nop 1")
    a(f"v_permlane32_swap_b32 v{vdst}, v{vdst+2}\nv_permlane32_swap_b32 v{vdst+1}, v{vdst+3}\ns_nop 1")
    a(f"v_add_f32 v{vdst}, v{vdst}, v{vdst+2}\nv_add_f32 v{vdst+1}, v{vdst+1}, v{vdst+3}")
    a(f"v_mul_f32 v{vNM}, {f2u(-1.0/512):#x}, v{vdst}")
    a(f"v_mul_f32 v{vdst+1}, {f2u(1.0/512):#x}, v{vdst+1}")
    a(f"v_fma_f32 v{vdst+1}, -v{vNM}, v{vNM}, v{vdst+1}")
    a(f"v_max_f32 v{vdst+1}, 0, v{vdst+1}")
    a(f"v_add_f32 v{vdst+1}, {f2u(1e-5):#x}, v{vdst+1}")
    a(f"v_rsq_f32 v{vRS}, v{vdst+1}\ns_nop 0")

def gen_ga(a, kind):
    qkv = kind == "qkv"
    NT = 3 if qkv else 4
    wf = WQF if qkv else W1F
    cs = CSQ if qkv else CS1
    NG = 32 if qkv else 16
    CSL = 131072
    a.c(f"================ GA {kind} ================")
    lskip = a.newlabel("ga_skip")
    if not qkv:
        a(f"s_cmp_ge_u32 s{S_I}, 28\ns_cbranch_scc1 {lskip}")
    a(f"s_and_b32 s13, s{S_X}, 3\ns_lshl_b32 s13, s13, 2\ns_and_b32 s15, s{S_I}, 3\ns_add_u32 s13, s13, s15")
    if qkv:
        a(f"s_lshr_b32 s14, s{S_X}, 2\ns_lshl_b32 s14, s14, 3\ns_lshr_b32 s15, s{S_I}, 2\ns_add_u32 s14, s14, s15")
    else:
        a(f"s_lshr_b32 s14, s{S_X}, 2\ns_mul_i32 s14, s14, 7\ns_lshr_b32 s15, s{S_I}, 2\ns_add_u32 s14, s14, s15")
    a(f"s_mul_i32 s16, s14, {NT*32768}\ns_add_u32 s16, s16, {wf}")
    a(f"s_lshl_b32 s17, s{S_WAVE}, 12")
    a("s_add_u32 s16, s16, s17")
    def wdma():
        for t in range(NT):
            a(f"s_add_u32 m0, s17, {t*32768}")
            a(f"s_add_u32 s18, s16, {t*32768}")
            for j in range(4):
                a.vmop(f"buffer_load_dwordx4 v2, s[4:7], s18 offen offset:{j*1024} lds", "w")
    def pre_nonsync():
        wdma()
        def csdma():
            a(f"s_mul_i32 s18, s14, {NT*128}\ns_add_u32 s18, s18, {cs}")
            a("v_lshlrev_b32 v4, 2, v1")
            a(f"s_mov_b32 m0, {CSL}\ns_nop 0")
            a.vmop("buffer_load_dword v4, s[4:7], s18 offen lds", "w")
            a(f"s_mov_b32 m0, {CSL + 256}\ns_add_u32 s18, s18, 256")
            a.vmop("buffer_load_dword v4, s[4:7], s18 offen lds", "w")
        if_wave(a, "eq", 0, csdma)
    if_wave(a, "lt", SYNCW, pre_nonsync)
    a.vmreset()
    def do_poll():
        if qkv:
            l1 = a.newlabel("q1")
            a(f"s_cmp_eq_u32 s{S_L}, 0\ns_cbranch_scc1 {l1}")
            a("v_lshrrev_b32 v8, 3, v1\ns_lshl_b32 s19, s13, 1\nv_add_u32 v8, s19, v8\nv_and_b32 v9, 7, v1")
            inv_gb(a, 8, 9)
            a("s_mov_b32 s19, 5")
            poll(a, 16, 19)
            a.label(l1)
        else:
            a("v_lshrrev_b32 v8, 3, v1\ns_lshl_b32 s19, s13, 1\nv_add_u32 v8, s19, v8\nv_and_b32 v9, 7, v1")
            inv_gb(a, 8, 9)
            phase_id(a, 19, 2)
            poll(a, 16, 19)
    if_wave(a, "eq", SYNCW, do_poll)
    if_wave(a, "lt", 4, lambda: a("s_waitcnt vmcnt(0)"))
    a("s_barrier")
    stamp(a, 1 if qkv else 7)
    a.vmreset()
    lcomp = a.newlabel("ga_comp"); lend = a.newlabel("ga_end")
    a(f"s_cmp_lt_u32 s{S_WAVE}, 4\ns_cbranch_scc1 {lcomp}")
    if_wave(a, "eq", SYNCW, wdma)
    a("s_waitcnt vmcnt(0)")
    a("s_barrier")
    a(f"s_branch {lend}")
    a.vmreset()
    a.label(lcomp)
    VX = 16; VACC = VX + 128; VW = VACC + NT * 16; VST = VX + 96
    VNM = 4; VRS = 5; VT = 6
    assert VW + 2 * NT * 4 <= 250
    a("v_add_u32 v3, 0x10000, v2")
    a(f"s_lshl_b32 s15, s13, 2\ns_add_u32 s15, s15, s{S_WAVE}")
    if qkv:
        a(f"s_lshl_b32 s16, s{S_L}, 22")
        a(f"s_lshl_b32 s19, s{S_L}, 20\ns_add_u32 s19, s19, {STB}")
    else:
        a(f"s_lshl_b32 s16, s{S_L}, 22\ns_add_u32 s16, s16, {XF[1]}")
        a(f"s_lshl_b32 s19, s{S_L}, 20\ns_add_u32 s19, s19, {STB + ST_STRIDE}")
    a("s_lshl_b32 s17, s15, 15\ns_add_u32 s16, s16, s17")
    def xload(s):
        j = s % 4
        if j == 0 and s > 0: a("s_add_u32 s16, s16, 4096")
        a.vmop(f"buffer_load_dwordx4 v[{VX+4*s}:{VX+4*s+3}], v2, s[4:7], s16 offen offset:{j*1024}", f"x{s}")
    D = 12
    for s in range(4): xload(s)
    stats_issue(a, NG, VT, VST, 15, 19, 18)
    for s in range(4, D): xload(s)
    def rd(s, buf):
        for t in range(NT):
            off = (t * 32 + s) * 1024
            base = 2 if off < 65536 else 3
            a(f"ds_read_b128 v[{VW+(buf*NT+t)*4}:{VW+(buf*NT+t)*4+3}], v{base} offset:{off & 0xffff}")
    for s in range(33):
        if s < 32:
            if s == 16:
                a("s_barrier")
            rd(s, s & 1)
        if s >= 1:
            p = s - 1
            if p + D < 32: xload(p + D)
            a.vmwait(f"x{p}", f"lgkmcnt({NT if s < 32 else 0})")
            for t in range(NT):
                wb = VW + ((p & 1) * NT + t) * 4
                cin = "0" if p == 0 else f"v[{VACC+16*t}:{VACC+16*t+15}]"
                a(f"v_mfma_f32_32x32x16_bf16 v[{VACC+16*t}:{VACC+16*t+15}], v[{wb}:{wb+3}], v[{VX+4*p}:{VX+4*p+3}], {cin}")
            if p == 2:
                stats_finish(a, NG, VST, VNM, VRS)
    stamp(a, 2 if qkv else 8)
    a(f"v_lshrrev_b32 v{VT}, 5, v1\nv_lshlrev_b32 v{VT}, 4, v{VT}\nv_add_u32 v{VT}, {CSL}, v{VT}")
    for t in range(NT):
        for q in range(4):
            a(f"ds_read_b128 v[{VX+(t*4+q)*4}:{VX+(t*4+q)*4+3}], v{VT} offset:{t*128+q*32}")
            if (t * 4 + q) == 11: a("s_waitcnt lgkmcnt(4)")
    if qkv:
        a(f"s_mul_i32 s21, s14, {2*NT*65536}\ns_lshl_b32 s22, s15, 10\ns_add_u32 s21, s21, s22")
        a(f"s_mul_i32 s22, s{S_L}, {6*MB}\ns_add_u32 s21, s21, s22\ns_add_u32 s21, s21, {QKVF}")
        ostep = 65536
    else:
        a(f"s_mul_i32 s21, s15, {112*1024}\ns_mul_i32 s22, s14, {2*NT*1024}\ns_add_u32 s21, s21, s22")
        a(f"s_lshl_b32 s22, s{S_L}, 23\ns_add_u32 s21, s21, s22\ns_add_u32 s21, s21, {HF}")
        ostep = 1024
    a("s_waitcnt lgkmcnt(0)")
    a("s_nop 7")
    for t in range(NT):
        if qkv:
            a(f"s_mul_i32 s23, s14, {NT}\ns_add_u32 s23, s23, {t}\ns_cmp_lt_u32 s23, 16")
            a(f"s_cselect_b32 s24, {f2u(QSCALE):#x}, 1.0")
            a(f"v_mul_f32 v{VT}, s24, v{VRS}")
            vrs = VT
        else: vrs = VRS
        for r in range(16):
            a(f"v_fma_f32 v{VACC+16*t+r}, v{VNM}, v{VX+t*16+r}, v{VACC+16*t+r}")
        for r in range(16):
            a(f"v_mul_f32 v{VACC+16*t+r}, v{vrs}, v{VACC+16*t+r}")
        if not qkv:
            for r in range(16): a(f"v_max_f32 v{VACC+16*t+r}, 0, v{VACC+16*t+r}")
        P = VX + 64 + t * 8
        for i in range(8): a(f"v_cvt_pk_bf16_f32 v{P+i}, v{VACC+16*t+2*i}, v{VACC+16*t+2*i+1}")
        for u in range(2):
            a(f"s_add_u32 s23, s21, {(2*t+u)*ostep}")
            a.vmop(f"buffer_store_dwordx4 v[{P+4*u}:{P+4*u+3}], v2, s[4:7], s23 offen sc1", "st")
    a.label(lend)
    signal(a, 0 if qkv else 3)
    a.label(lskip)

def gen_att(a):
    a.c("================ ATT ================")
    KL = 0; VL = 65536; ONES = 131072; EXL = 139264; UNR = 4
    a(f"s_lshl_b32 s13, s{S_X}, 2\ns_and_b32 s15, s{S_I}, 3\ns_add_u32 s13, s13, s15\ns_lshr_b32 s14, s{S_I}, 2")
    a("v_mov_b32 v4, 0x3f803f80\nv_mov_b32 v5, 0x3f803f80\nv_mov_b32 v6, 0x3f803f80\nv_mov_b32 v7, 0x3f803f80")
    a(f"v_lshlrev_b32 v12, 4, v0\nv_add_u32 v12, {ONES}, v12\nds_write_b128 v12, v[4:7]")
    def do_poll():
        a("s_lshr_b32 s16, s13, 1")
        a("s_add_u32 s17, s16, 16\ns_mul_i32 s17, s17, 171\ns_lshr_b32 s17, s17, 9")
        a("s_add_u32 s18, s16, 32\ns_mul_i32 s18, s18, 171\ns_lshr_b32 s18, s18, 9")
        a("s_mul_i32 s19, s16, 171\ns_lshr_b32 s19, s19, 9")
        for v in range(48): assert (v * 171) >> 9 == v // 3
        a("v_and_b32 v8, 15, v1\nv_mov_b32 v9, s17\nv_mov_b32 v10, s18")
        a("v_cmp_le_u32 vcc, 16, v1\ns_nop 1\nv_cndmask_b32 v9, v9, v10, vcc")
        a("v_mov_b32 v10, s19\ns_lshl_b32 s19, s14, 1\nv_add_u32 v11, s19, v8")
        a("v_cmp_le_u32 vcc, 32, v1\ns_nop 1\nv_cndmask_b32 v9, v9, v10, vcc\nv_cndmask_b32 v8, v8, v11, vcc")
        inv_ga_qkv(a, 8, 9)
        phase_id(a, 19, 0)
        poll(a, 34, 19)
    if_wave(a, "eq", SYNCW, do_poll)
    a("s_waitcnt lgkmcnt(0)")
    a("s_barrier")
    stamp(a, 3)
    a.vmreset()
    a(f"s_and_b32 s15, s{S_WAVE}, 3\ns_lshr_b32 s16, s{S_WAVE}, 2")
    a("s_lshl_b32 s17, s14, 3\ns_lshl_b32 s18, s15, 1\ns_add_u32 s17, s17, s18")
    a(f"s_mul_i32 s18, s{S_L}, {6*MB}\ns_add_u32 s18, s18, {QKVF}\ns_lshl_b32 s19, s13, 16\ns_add_u32 s18, s18, s19")
    VQ = [8, 12]
    a("s_lshl_b32 s19, s17, 10\ns_add_u32 s19, s19, s18")
    a.vmop(f"buffer_load_dwordx4 v[8:11], v2, s[4:7], s19 offen", "q")
    a.vmop(f"buffer_load_dwordx4 v[12:15], v2, s[4:7], s19 offen offset:1024", "q")
    a("v_lshrrev_b32 v3, 1, v1\nv_and_b32 v4, 1, v1\nv_lshl_add_u32 v3, v4, 5, v3\nv_lshlrev_b32 v3, 4, v3")
    a("s_lshl_b32 s20, s16, 5\ns_add_u32 s20, s20, s15\ns_lshl_b32 s20, s20, 10")
    a(f"s_add_u32 s21, s18, s20\ns_add_u32 s22, s21, {64*65536}\ns_add_u32 s21, s21, {32*65536}")
    def chunk(c):
        a(f"s_add_u32 m0, s20, {KL + c*4096}\ns_add_u32 s19, s21, {c*4096}")
        a.vmop(f"buffer_load_dwordx4 v2, s[4:7], s19 offen lds", f"c{c}")
        a(f"s_add_u32 m0, s20, {VL + c*4096}\ns_add_u32 s19, s22, {c*4096}")
        a.vmop(f"buffer_load_dwordx4 v3, s[4:7], s19 offen lds", f"c{c}")
    for c in range(3): chunk(c)
    a("s_lshl_b32 s23, s16, 15")
    a("v_add_u32 v16, s23, v2")
    a("v_lshrrev_b32 v17, 5, v1\nv_lshlrev_b32 v17, 2, v17\nv_bfe_u32 v4, v1, 2, 2\nv_add_u32 v17, v17, v4\nv_lshlrev_b32 v17, 5, v17")
    a("v_and_b32 v4, 1, v1\nv_lshl_add_u32 v17, v4, 4, v17\nv_bfe_u32 v4, v1, 1, 1\nv_lshl_add_u32 v17, v4, 3, v17")
    a(f"s_add_u32 s23, s23, {VL}\nv_add_u32 v17, s23, v17")
    a(f"v_lshrrev_b32 v4, 5, v1\nv_xor_b32 v4, 1, v4\nv_lshlrev_b32 v4, 7, v4\nv_add_u32 v4, {ONES}, v4")
    a(f"v_bfe_u32 v5, v1, 4, 1\nv_cmp_eq_u32 vcc, 1, v5\nv_mov_b32 v18, {UNR*1024}\nv_mov_b32 v6, 0")
    a("v_cndmask_b32 v17, v17, v4, vcc\nv_cndmask_b32 v18, v18, v6, vcc")
    VS = [32, 48]; VP = [64, 72]; VO = [80, 96]; VK = [112, 116]; VV = [120, 128]
    def rdK(Tl, buf): a(f"ds_read_b128 v[{VK[buf]}:{VK[buf]+3}], v16 offset:{KL + Tl*1024}")
    def rdV(Tl, buf):
        for t in range(2):
            for u in range(2):
                d = VV[buf] + 4*t + 2*u
                a(f"ds_read_b64_tr_b16 v[{d}:{d+1}], v17 offset:{Tl*1024 + t*512 + u*256}")
    def qk(q, kb): a(f"v_mfma_f32_32x32x16_bf16 v[{VS[q]}:{VS[q]+15}], v[{VK[kb]}:{VK[kb]+3}], v[{VQ[q]}:{VQ[q]+3}], 0")
    def pv(q, vb, t): a(f"v_mfma_f32_32x32x16_bf16 v[{VO[q]}:{VO[q]+15}], v[{VV[vb]+4*t}:{VV[vb]+4*t+3}], v[{VP[q]+4*t}:{VP[q]+4*t+3}], v[{VO[q]}:{VO[q]+15}]")
    def ex(q, lo, hi):
        for i in range(lo, hi): a(f"v_exp_f32 v{VS[q]+i}, v{VS[q]+i}")
    def cv(q, lo, hi):
        for i in range(lo, hi): a(f"v_cvt_pk_bf16_f32 v{VP[q]+i}, v{VS[q]+2*i}, v{VS[q]+2*i+1}")
    for q in range(2):
        for r in range(16): a(f"v_mov_b32 v{VO[q]+r}, 0")
    a.vmwait(["q", "c0", "c1"])
    a("s_barrier")
    for c in range(3, 6): chunk(c)
    rdK(0, 0); rdK(1, 1); rdV(0, 0)
    a("s_waitcnt lgkmcnt(5)")
    qk(0, 0); qk(1, 0)
    a("s_nop 7\ns_nop 7")
    def tile(Tl, last):
        cur = Tl & 1; nx = cur ^ 1
        k2 = not (last and Tl >= UNR - 2)
        s1 = not (last and Tl == UNR - 1)
        if k2: rdK(Tl + 2, cur)
        ex(0, 0, 8); cv(0, 0, 4); ex(0, 8, 16)
        a(f"s_waitcnt lgkmcnt({1 if k2 else 0})")
        pv(0, cur, 0)
        cv(0, 4, 8)
        if s1:
            if Tl == UNR - 1:
                a("v_add_u32 v17, v17, v18")
                rdV(0, nx)
            else:
                rdV(Tl + 1, nx)
        else:
            a("s_nop 1")
        pv(0, cur, 1)
        if s1: qk(0, nx)
        ex(1, 0, 8); cv(1, 0, 4); ex(1, 8, 16)
        pv(1, cur, 0)
        cv(1, 4, 8)
        a("s_nop 1")
        pv(1, cur, 1)
        if s1: qk(1, nx)
    def group(last=False):
        for Tl in range(UNR): tile(Tl, last)
        if not last: a(f"v_add_u32 v16, {UNR*1024}, v16")
    group()
    a.vmwait("c2"); a("s_barrier")
    for c in range(6, 8): chunk(c)
    group()
    a.vmwait_all(); a("s_barrier")
    a("s_mov_b32 s24, 5")
    ll = a.newlabel("att_loop")
    a.label(ll)
    group()
    a(f"s_sub_u32 s24, s24, 1\ns_cmp_lg_u32 s24, 0\ns_cbranch_scc1 {ll}")
    group(last=True)
    stamp(a, 4)
    a("s_nop 7\ns_nop 7")
    a(f"s_mul_i32 s23, s{S_WAVE}, 3072\ns_add_u32 s23, s23, {EXL}\nv_add_u32 v4, s23, v2")
    a(f"s_xor_b32 s24, s{S_WAVE}, 4\ns_mul_i32 s24, s24, 3072\ns_add_u32 s24, s24, {EXL}\nv_add_u32 v5, s24, v2")
    l1 = a.newlabel("ex1"); l2 = a.newlabel("ex2")
    a(f"s_cmp_lg_u32 s16, 0\ns_cbranch_scc1 {l1}")
    for j in range(3): a(f"ds_write_b128 v4, v[{VO[1]+4*j}:{VO[1]+4*j+3}] offset:{j*1024}")
    a(f"s_branch {l2}")
    a.label(l1)
    for j in range(3): a(f"ds_write_b128 v4, v[{VO[0]+4*j}:{VO[0]+4*j+3}] offset:{j*1024}")
    for r in range(12): a(f"v_mov_b32 v{VO[0]+r}, v{VO[1]+r}")
    a.label(l2)
    a("s_waitcnt lgkmcnt(0)\ns_barrier")
    for j in range(3): a(f"ds_read_b128 v[{VS[0]+4*j}:{VS[0]+4*j+3}], v5 offset:{j*1024}")
    a("s_waitcnt lgkmcnt(0)")
    for r in range(9): a(f"v_add_f32 v{VO[0]+r}, v{VO[0]+r}, v{VS[0]+r}")
    a(f"v_rcp_f32 v4, v{VO[0]+8}\ns_nop 0")
    for r in range(8): a(f"v_mul_f32 v{VO[0]+r}, v4, v{VO[0]+r}")
    for i in range(4): a(f"v_cvt_pk_bf16_f32 v{VP[0]+i}, v{VO[0]+2*i}, v{VO[0]+2*i+1}")
    a("s_add_u32 s17, s17, s16\ns_lshl_b32 s17, s17, 15\ns_lshl_b32 s19, s13, 10\ns_add_u32 s17, s17, s19")
    a(f"s_lshl_b32 s19, s{S_L}, 21\ns_add_u32 s17, s17, s19\ns_add_u32 s17, s17, {OF}")
    a.vmop(f"buffer_store_dwordx4 v[{VP[0]}:{VP[0]+3}], v2, s[4:7], s17 offen sc1", "st")
    signal(a, 1)

def gb_roles(a):
    a(f"s_and_b32 s13, s{S_X}, 3\ns_lshl_b32 s13, s13, 3\ns_and_b32 s15, s{S_I}, 7\ns_add_u32 s13, s13, s15")
    a(f"s_lshr_b32 s14, s{S_X}, 2\ns_lshl_b32 s14, s14, 2\ns_lshr_b32 s15, s{S_I}, 3\ns_add_u32 s14, s14, s15")

def gen_wo(a):
    a.c("================ WO ================")
    KS = 32; KQ = 8
    gb_roles(a)
    VB = 16
    VWR = VB + KQ * 8
    VACC = VWR + KQ * 8
    VR = 8
    a(f"s_mul_i32 s15, s{S_WAVE}, {KQ*1024}")
    a(f"s_mul_i32 s18, s14, {2*KS*1024}\ns_add_u32 s18, s18, s15\ns_add_u32 s18, s18, {WOF}\ns_add_u32 s19, s18, {KS*1024}")
    def wpre():
        for s in range(KQ):
            if s == 4: a("s_add_u32 s18, s18, 4096\ns_add_u32 s19, s19, 4096")
            for bi, sb in enumerate((18, 19)):
                a.vmop(f"buffer_load_dwordx4 v[{VWR+8*s+4*bi}:{VWR+8*s+4*bi+3}], v2, s[4:7], s{sb} offen offset:{(s%4)*1024}", "w")
    if_wave(a, "lt", 4, wpre)
    def do_poll():
        a("v_mov_b32 v8, v1\ns_lshr_b32 s19, s13, 2\nv_mov_b32 v9, s19")
        inv_att(a, 8, 9)
        phase_id(a, 19, 1)
        poll(a, 32, 19)
    if_wave(a, "eq", SYNCW, do_poll)
    a("s_barrier")
    stamp(a, 5)
    lend = a.newlabel("wo_end")
    a(f"s_cmp_ge_u32 s{S_WAVE}, 4\ns_cbranch_scc1 L_wo_idle")
    a(f"s_mul_i32 s16, s13, {2*KS*1024}\ns_add_u32 s16, s16, s15\ns_lshl_b32 s17, s{S_L}, 21\ns_add_u32 s16, s16, s17\ns_add_u32 s16, s16, {OF}\ns_add_u32 s17, s16, {KS*1024}")
    for s in range(KQ):
        if s == 4: a("s_add_u32 s16, s16, 4096\ns_add_u32 s17, s17, 4096")
        for ai, sb in enumerate((16, 17)):
            a.vmop(f"buffer_load_dwordx4 v[{VB+8*s+4*ai}:{VB+8*s+4*ai+3}], v2, s[4:7], s{sb} offen offset:{(s%4)*1024}", f"k{s}")
    a(f"s_lshr_b32 s20, s{S_WAVE}, 1\ns_and_b32 s21, s{S_WAVE}, 1\ns_lshl_b32 s22, s13, 1\ns_add_u32 s20, s22, s20\ns_lshl_b32 s22, s14, 1\ns_add_u32 s21, s22, s21")
    a("s_lshl_b32 s22, s20, 15\ns_lshl_b32 s23, s21, 11\ns_add_u32 s22, s22, s23")
    a(f"s_lshl_b32 s23, s{S_L}, 22\ns_add_u32 s23, s23, s22")
    a.vmop(f"buffer_load_dwordx4 v[{VR}:{VR+3}], v2, s[4:7], s23 offen", "res")
    a.vmop(f"buffer_load_dwordx4 v[{VR+4}:{VR+7}], v2, s[4:7], s23 offen offset:1024", "res")
    for s in range(KQ):
        a.vmwait(f"k{s}")
        for ai in range(2):
            for bi in range(2):
                acc = VACC + (ai * 2 + bi) * 16
                cin = "0" if s == 0 else f"v[{acc}:{acc+15}]"
                a(f"v_mfma_f32_32x32x16_bf16 v[{acc}:{acc+15}], v[{VWR+8*s+4*bi}:{VWR+8*s+4*bi+3}], v[{VB+8*s+4*ai}:{VB+8*s+4*ai+3}], {cin}")
    a("s_nop 7\ns_nop 3")
    for w in range(4):
        l = a.newlabel("wo_wr")
        a(f"s_cmp_lg_u32 s{S_WAVE}, {w}\ns_cbranch_scc1 {l}")
        for d in range(4):
            if d == w: continue
            j = (w - d - 1) % 4
            for q in range(4):
                a(f"ds_write_b128 v2, v[{VACC+d*16+4*q}:{VACC+d*16+4*q+3}] offset:{(d*3+j)*4096 + q*1024}")
        for r in range(16): a(f"v_mov_b32 v{VB+r}, v{VACC+w*16+r}")
        a.label(l)
    a("s_waitcnt lgkmcnt(0)\ns_barrier")
    a(f"s_mul_i32 s26, s{S_WAVE}, {3*4096}\nv_add_u32 v3, s26, v2")
    for j in range(3):
        for q in range(4):
            a(f"ds_read_b128 v[{VB+16+16*j+4*q}:{VB+16+16*j+4*q+3}], v3 offset:{j*4096+q*1024}")
    for j in range(3):
        a(f"s_waitcnt lgkmcnt({8-4*j})")
        for r in range(16): a(f"v_add_f32 v{VB+r}, v{VB+r}, v{VB+16+16*j+r}")
    a.vmwait("res")
    for i in range(8):
        a(f"v_lshlrev_b32 v{VB+16+2*i}, 16, v{VR+i}\nv_and_b32 v{VB+17+2*i}, 0xffff0000, v{VR+i}")
    for r in range(16): a(f"v_add_f32 v{VB+r}, v{VB+r}, v{VB+16+r}")
    P = VB + 32
    for i in range(8): a(f"v_cvt_pk_bf16_f32 v{P+i}, v{VB+2*i}, v{VB+2*i+1}")
    a(f"s_lshl_b32 s23, s{S_L}, 22\ns_add_u32 s23, s23, s22\ns_add_u32 s23, s23, {XF[1]}")
    a.vmop(f"buffer_store_dwordx4 v[{P}:{P+3}], v2, s[4:7], s23 offen sc1", "st")
    a.vmop(f"buffer_store_dwordx4 v[{P+4}:{P+7}], v2, s[4:7], s23 offen offset:1024 sc1", "st")
    S = VB + 48
    a(f"v_mov_b32 v{S+4}, 0x3f803f80\nv_mov_b32 v{S}, 0\nv_mov_b32 v{S+1}, 0\ns_nop 0")
    for i in range(8):
        a(f"v_dot2_f32_bf16 v{S}, v{P+i}, v{S+4}, v{S}\nv_dot2_f32_bf16 v{S+1}, v{P+i}, v{P+i}, v{S+1}")
    a(f"v_mov_b32 v{S+2}, v{S}\nv_mov_b32 v{S+3}, v{S+1}\ns_nop 1")
    a(f"v_permlane32_swap_b32 v{S}, v{S+2}\nv_permlane32_swap_b32 v{S+1}, v{S+3}\ns_nop 1")
    a(f"v_add_f32 v{S}, v{S}, v{S+2}\nv_add_f32 v{S+1}, v{S+1}, v{S+3}")
    a(f"s_lshl_b32 s26, s21, 14\ns_lshl_b32 s27, s20, 8\ns_add_u32 s26, s26, s27\ns_lshl_b32 s27, s{S_L}, 20\ns_add_u32 s26, s26, s27\ns_add_u32 s26, s26, {STB + ST_STRIDE}")
    a(f"v_lshlrev_b32 v{S+5}, 3, v1")
    set_exec(a, 32)
    a.vmop(f"buffer_store_dwordx2 v[{S}:{S+1}], v{S+5}, s[4:7], s26 offen sc1", "st")
    a("s_mov_b64 exec, -1")
    a(f"s_branch {lend}")
    a.label("L_wo_idle")
    a("s_barrier")
    a.label(lend)
    signal(a, 2)

def gen_w2(a):
    a.c("================ W2 ================")
    KS = 112; KE = 14
    gb_roles(a)
    VWR = 16
    VB = VWR + KE * 8
    D = 7
    VACC = VB + D * 8
    VR = 8
    assert VACC + 64 <= 250
    a(f"s_mul_i32 s15, s{S_WAVE}, {KE*1024}")
    a(f"s_mul_i32 s18, s14, {2*KS*1024}\ns_add_u32 s18, s18, s15\ns_add_u32 s18, s18, {W2F}\ns_add_u32 s19, s18, {KS*1024}")
    def wpre():
        a("s_mov_b32 s26, s18\ns_mov_b32 s27, s19")
        for s in range(KE):
            if s % 4 == 0 and s > 0: a("s_add_u32 s26, s26, 4096\ns_add_u32 s27, s27, 4096")
            for bi, sb in enumerate((26, 27)):
                a.vmop(f"buffer_load_dwordx4 v[{VWR+8*s+4*bi}:{VWR+8*s+4*bi+3}], v2, s[4:7], s{sb} offen offset:{(s%4)*1024}", "w")
    if_wave(a, "lt", SYNCW, wpre)
    a.vmreset()
    def do_poll():
        a("s_lshr_b32 s20, s13, 1\nv_mov_b32 v8, s20\nv_mov_b32 v9, v1")
        inv_ga_w1(a, 8, 9)
        phase_id(a, 20, 3)
        a("s_mov_b32 s28, s20")
        poll(a, 14, 28)
        wpre()
    if_wave(a, "eq", SYNCW, do_poll)
    a.vmreset()
    for s in range(2 * KE): a.vm.append("w")
    a("s_barrier")
    stamp(a, 9)
    a(f"s_mul_i32 s16, s13, {2*KS*1024}\ns_add_u32 s16, s16, s15\ns_lshl_b32 s17, s{S_L}, 23\ns_add_u32 s16, s16, s17\ns_add_u32 s16, s16, {HF}\ns_add_u32 s17, s16, {KS*1024}")
    if PROF: a.vm.append("prof_")
    def xload(s):
        b = VB + (s % D) * 8
        if s % 4 == 0 and s > 0: a("s_add_u32 s16, s16, 4096\ns_add_u32 s17, s17, 4096")
        for ai, sb in enumerate((16, 17)):
            a.vmop(f"buffer_load_dwordx4 v[{b+4*ai}:{b+4*ai+3}], v2, s[4:7], s{sb} offen offset:{(s%4)*1024}", f"k{s}")
    for s in range(D): xload(s)
    a(f"s_lshr_b32 s20, s{S_WAVE}, 2\ns_lshl_b32 s22, s13, 1\ns_add_u32 s20, s22, s20")
    a(f"s_and_b32 s21, s{S_WAVE}, 3\ns_lshl_b32 s22, s14, 2\ns_add_u32 s21, s22, s21")
    a("s_lshl_b32 s22, s20, 15\ns_lshl_b32 s23, s21, 10\ns_add_u32 s22, s22, s23")
    a(f"s_lshl_b32 s23, s{S_L}, 22\ns_add_u32 s23, s23, s22\ns_add_u32 s23, s23, {XF[1]}")
    a.vmop(f"buffer_load_dwordx4 v[{VR}:{VR+3}], v2, s[4:7], s23 offen", "res")
    for s in range(KE):
        a.vmwait(f"k{s}")
        b = VB + (s % D) * 8
        for ai in range(2):
            for bi in range(2):
                acc = VACC + (ai * 2 + bi) * 16
                cin = "0" if s == 0 else f"v[{acc}:{acc+15}]"
                a(f"v_mfma_f32_32x32x16_bf16 v[{acc}:{acc+15}], v[{VWR+8*s+4*bi}:{VWR+8*s+4*bi+3}], v[{b+4*ai}:{b+4*ai+3}], {cin}")
        if s + D < KE: xload(s + D)
    stamp(a, 10)
    a("s_nop 7\ns_nop 3")
    a("v_add_u32 v3, 0x10000, v2")
    for w in range(8):
        l = a.newlabel("w2_wr")
        a(f"s_cmp_lg_u32 s{S_WAVE}, {w}\ns_cbranch_scc1 {l}")
        for d in range(8):
            if d == w: continue
            j = (w - d - 1) % 8
            off = (d * 7 + j) * 2048
            base = 2 if off < 65536 - 2048 + 1 and off + 1024 < 65536 else 3
            o = off if base == 2 else off - 65536
            if o < 0:
                base = 2; o = off
            for q in range(2):
                oo = o + q * 1024
                bb = base
                if bb == 2 and oo > 65535: bb = 3; oo -= 65536
                a(f"ds_write_b128 v{bb}, v[{VACC+d*8+4*q}:{VACC+d*8+4*q+3}] offset:{oo}")
        for r in range(8): a(f"v_mov_b32 v{VB+r}, v{VACC+w*8+r}")
        a.label(l)
    a("s_waitcnt lgkmcnt(0)\ns_barrier")
    a(f"s_mul_i32 s26, s{S_WAVE}, {7*2048}\nv_add_u32 v3, s26, v2")
    T = VWR
    for j in range(7):
        for q in range(2):
            a(f"ds_read_b128 v[{T+8*j+4*q}:{T+8*j+4*q+3}], v3 offset:{j*2048+q*1024}")
    for j in range(7):
        a(f"s_waitcnt lgkmcnt({12-2*j})")
        for r in range(8): a(f"v_add_f32 v{VB+r}, v{VB+r}, v{T+8*j+r}")
    a.vmwait("res")
    for i in range(4):
        a(f"v_lshlrev_b32 v{T+2*i}, 16, v{VR+i}\nv_and_b32 v{T+1+2*i}, 0xffff0000, v{VR+i}")
    for r in range(8): a(f"v_add_f32 v{VB+r}, v{VB+r}, v{T+r}")
    P = VB + 8
    for i in range(4): a(f"v_cvt_pk_bf16_f32 v{P+i}, v{VB+2*i}, v{VB+2*i+1}")
    lfin = a.newlabel("w2_fin"); lend = a.newlabel("w2_end")
    a(f"s_cmp_lg_u32 s{S_L}, 0\ns_cbranch_scc1 {lfin}")
    a(f"s_add_u32 s23, s22, {XF[2]}")
    a.vmop(f"buffer_store_dwordx4 v[{P}:{P+3}], v2, s[4:7], s23 offen sc1", "st")
    S = VB + 16
    a(f"v_mov_b32 v{S+4}, 0x3f803f80\nv_mov_b32 v{S}, 0\nv_mov_b32 v{S+1}, 0\ns_nop 0")
    for i in range(4):
        a(f"v_dot2_f32_bf16 v{S}, v{P+i}, v{S+4}, v{S}\nv_dot2_f32_bf16 v{S+1}, v{P+i}, v{P+i}, v{S+1}")
    a(f"v_mov_b32 v{S+2}, v{S}\nv_mov_b32 v{S+3}, v{S+1}\ns_nop 1")
    a(f"v_permlane32_swap_b32 v{S}, v{S+2}\nv_permlane32_swap_b32 v{S+1}, v{S+3}\ns_nop 1")
    a(f"v_add_f32 v{S}, v{S}, v{S+2}\nv_add_f32 v{S+1}, v{S+1}, v{S+3}")
    a(f"s_lshl_b32 s26, s21, 14\ns_lshl_b32 s27, s20, 8\ns_add_u32 s26, s26, s27\ns_add_u32 s26, s26, {STB + 2*ST_STRIDE}")
    a(f"v_lshlrev_b32 v{S+5}, 3, v1")
    set_exec(a, 32)
    a.vmop(f"buffer_store_dwordx2 v[{S}:{S+1}], v{S+5}, s[4:7], s26 offen sc1", "st")
    a("s_mov_b64 exec, -1")
    signal(a, 4)
    a(f"s_branch {lend}")
    a.label(lfin)
    a("s_load_dwordx2 s[24:25], s[0:1], 48")
    a("s_waitcnt lgkmcnt(0)")
    a(f"s_and_b32 s25, s25, 0xffff\ns_mov_b32 s26, {2048*512*2}\ns_mov_b32 s27, 0x00020000")
    a(f"v_permlane32_swap_b32 v{P}, v{P+2}\nv_permlane32_swap_b32 v{P+1}, v{P+3}")
    Tt = VB + 16
    a(f"v_and_b32 v{Tt}, 31, v1\nv_lshlrev_b32 v{Tt}, 10, v{Tt}\nv_lshrrev_b32 v{Tt+1}, 5, v1\nv_lshl_add_u32 v{Tt}, v{Tt+1}, 4, v{Tt}")
    a("s_lshl_b32 s28, s20, 15\ns_lshl_b32 s29, s21, 5\ns_add_u32 s28, s28, s29")
    a(f"buffer_store_dwordx4 v[{P}:{P+3}], v{Tt}, s[24:27], s28 offen")
    a.label(lend)

def build():
    a = Asm()
    a.lines.append(f".globl {NAME}\n.p2align 8\n.type {NAME},@function")
    a.label(NAME)
    a(f"s_cmp_ge_u32 s2, 256\ns_cbranch_scc1 L_end")
    a("s_load_dwordx2 s[4:5], s[0:1], 64")
    a("s_load_dwordx2 s[16:17], s[0:1], 56")
    a("v_and_b32 v1, 63, v0\nv_lshrrev_b32 v2, 6, v0\ns_nop 0")
    a(f"v_readfirstlane_b32 s{S_WAVE}, v2")
    a(f"s_and_b32 s{S_X}, s2, 7\ns_lshr_b32 s{S_I}, s2, 3")
    a("v_lshlrev_b32 v2, 4, v1")
    a(f"s_mov_b32 s{S_L}, 0")
    a("s_waitcnt lgkmcnt(0)")
    a(f"s_and_b32 s5, s5, 0xffff\ns_mov_b32 s6, {WS_SIZE}\ns_mov_b32 s7, 0x00020000")
    def nonce():
        a("s_and_b32 s17, s17, 0xffff\ns_mov_b32 s18, 256\ns_mov_b32 s19, 0x00020000")
        a("s_memrealtime s[20:21]\ns_waitcnt lgkmcnt(0)")
        a("s_lshl_b32 s20, s20, 8\ns_or_b32 s20, s20, 0x80000000")
        a("v_mov_b32 v4, s20\nv_mov_b32 v5, 0\nv_mov_b32 v6, 0")
        a("s_mov_b64 exec, 1")
        a("buffer_atomic_cmpswap v[4:5], v6, s[16:19], 0 offen sc0")
        a("s_waitcnt vmcnt(0)")
        a("s_mov_b64 exec, -1")
        a("v_readfirstlane_b32 s21, v4")
        a("s_nop 3")
        a(f"s_cmp_eq_u32 s21, 0\ns_cselect_b32 s{S_NONCE}, s20, s21")
    a(f"s_mov_b32 s{S_NONCE}, 0")
    if_wave(a, "eq", SYNCW, nonce)
    stamp(a, 0)
    gen_prep(a)
    def prep_wait():
        a("v_mov_b32 v4, v1\ns_mov_b32 s19, 0")
        poll(a, 64, 19, per=4)
    if_wave(a, "eq", SYNCW, prep_wait)
    a("s_barrier")
    a.label("L_layer")
    gen_ga(a, "qkv")
    gen_att(a)
    gen_wo(a)
    gen_ga(a, "w1")
    stamp(a, 11)
    gen_w2(a)
    a(f"s_add_u32 s{S_L}, s{S_L}, 1\ns_cmp_lt_u32 s{S_L}, 2\ns_cbranch_scc1 L_layer")
    if PROF:
        a(f"s_mov_b32 s{S_L}, 1")
        stamp(a, 12)
    a.label("L_end")
    a("s_endpgm")
    hdr = open("header.txt").read()
    s = hdr + "; @launch grid=(256,1,1) block=(512,1,1) lds=163840\n"
    s += '.amdgcn_target "amdgcn-amd-amdhsa--gfx950"\n.text\n' + a.text()
    s += f""".section .rodata,"a"
.p2align 6
.amdhsa_kernel {NAME}
  .amdhsa_next_free_vgpr 256
  .amdhsa_next_free_sgpr 96
  .amdhsa_accum_offset 256
  .amdhsa_group_segment_fixed_size 0
  .amdhsa_kernarg_size 72
  .amdhsa_user_sgpr_count 2
  .amdhsa_user_sgpr_kernarg_segment_ptr 1
  .amdhsa_system_sgpr_workgroup_id_x 1
  .amdhsa_float_denorm_mode_32 3
.end_amdhsa_kernel
"""
    return s

if __name__ == "__main__":
    out = sys.argv[1] if len(sys.argv) > 1 else "mega.s"
    if "--prof" in sys.argv: PROF = True
    open(out, "w").write(build())
```

```python
import sys, math, struct, json

MB = 1 << 20
XF   = [0 * MB, 2 * MB, 4 * MB, 6 * MB]
WQF  = 8 * MB
WOF  = WQF + 0x180000
W1F  = 10 * MB
W2F  = 12 * MB
QKVF = 14 * MB
OF   = 26 * MB
HF   = 30 * MB
STB  = 46 * MB
ST_STRIDE = 0x80000
CSQ  = 48 * MB
CS1  = CSQ + 0x2000
FLG  = 49 * MB
PROF_WS = 50 * MB
WS_SIZE = 56 * MB
QSCALE = 0.25 * math.log2(math.e)
PROF = False
FORCE_GLOBAL = False
NAME = "interleave_layers__mha_block__dense_activation_relu__prompt_kernel"
SPIN_MAX = 1 << 18

def f2u(f): return struct.unpack("<I", struct.pack("<f", f))[0]

class Asm:
    def __init__(self):
        self.lines = []; self.vm = []; self.uid = 0
    def __call__(self, s):
        for l in s.split("\n"):
            l = l.strip()
            if l: self.lines.append("    " + l)
    def label(self, name): self.lines.append(name + ":")
    def newlabel(self, base):
        self.uid += 1
        return f"L_{base}_{self.uid}"
    def c(self, s): self.lines.append("    ; " + s)
    def vmop(self, text, tag=None):
        self(text); self.vm.append(tag)
        assert len(self.vm) <= 63, "too many outstanding vm ops"
    def vmwait(self, tag, extra=""):
        tags = tag if isinstance(tag, (list, tuple, set)) else [tag]
        last = -1
        for i, t in enumerate(self.vm):
            if t in tags: last = i
        if last < 0:
            if extra: self("s_waitcnt " + extra)
            return
        n = len(self.vm) - 1 - last
        self(f"s_waitcnt vmcnt({n}) {extra}".strip())
        self.vm = self.vm[last + 1:]
    def vmwait_all(self, extra=""):
        self(f"s_waitcnt vmcnt(0) {extra}".strip()); self.vm = []
    def vmreset(self): self.vm = []
    def text(self): return "\n".join(self.lines) + "\n"

S_WG = 2; S_WAVE = 8; S_NONCE = 9; S_L = 10; S_X = 11; S_I = 12; S_MODE = 3
S_ROLE = 36
SYNCW = 7
LDS_BCAST = 163840 - 64

STAMPS = []
def stamp(a, name):
    if not PROF: return
    if name not in STAMPS: STAMPS.append(name)
    i = STAMPS.index(name)
    assert i < 64
    l0 = a.newlabel("st"); l1 = a.newlabel("st")
    a("s_memrealtime s[68:69]")
    a("s_waitcnt lgkmcnt(0)")
    a(f"s_cmp_lg_u32 s{S_L}, 0\ns_cbranch_scc1 {l0}")
    a(f"v_writelane_b32 v254, s68, {i}\ns_branch {l1}")
    a.label(l0)
    a(f"v_writelane_b32 v255, s68, {i}")
    a.label(l1)

def set_exec(a, nl):
    mask = (1 << nl) - 1
    a(f"s_mov_b32 exec_lo, {hex(mask & 0xffffffff)}")
    a(f"s_mov_b32 exec_hi, {hex(mask >> 32)}")

def phase_id(a, dst, k):
    a(f"s_mul_i32 s{dst}, s{S_L}, 5")
    a(f"s_add_u32 s{dst}, s{dst}, {1 + k}")

def if_wave(a, cond, val, body, base="w"):
    l = a.newlabel(base)
    inv = {"eq": "lg", "lt": "ge", "ge": "lt", "lg": "eq"}[cond]
    a(f"s_cmp_{inv}_u32 s{S_WAVE}, {val}")
    a(f"s_cbranch_scc1 {l}")
    body()
    a.label(l)

def signal(a, k, glob, keep=0):
    nm = ["qkv", "att", "wo", "w1", "w2"][k]
    stamp(a, nm + ":pre_drain")
    a(f"s_waitcnt vmcnt({keep})")
    stamp(a, nm + ":drained")
    a("s_barrier")
    def body():
        phase_id(a, 20, k)
        a(f"s_add_u32 s21, s{S_NONCE}, s20")
        a(f"s_lshl_b32 s20, s20, 8\ns_add_u32 s20, s20, s{S_ROLE}\ns_lshl_b32 s20, s20, 7\ns_add_u32 s20, s20, {FLG}")
        a("v_mov_b32 v4, s21\nv_mov_b32 v5, 0")
        a("s_mov_b64 exec, 1")
        if glob:
            a("buffer_store_dword v4, v5, s[4:7], s20 offen sc1")
        else:
            l0 = a.newlabel("sg"); l1 = a.newlabel("sg")
            a(f"s_cmp_eq_u32 s{S_MODE}, 0\ns_cbranch_scc1 {l0}")
            a("buffer_store_dword v4, v5, s[4:7], s20 offen")
            a(f"s_branch {l1}")
            a.label(l0)
            a("buffer_wbl2 sc1\ns_waitcnt vmcnt(0)")
            a("buffer_store_dword v4, v5, s[4:7], s20 offen sc1")
            a.label(l1)
        a("s_mov_b64 exec, -1")
    if_wave(a, "eq", SYNCW, body, "sig")

def poll(a, nlanes, phase_sreg):
    lp = a.newlabel("poll"); ld = a.newlabel("polld")
    a(f"s_add_u32 s21, s{S_NONCE}, s{phase_sreg}")
    a(f"s_lshl_b32 s20, s{phase_sreg}, 15\ns_add_u32 s20, s20, {FLG}")
    a("v_lshlrev_b32 v4, 7, v4")
    set_exec(a, nlanes)
    a("s_mov_b32 s22, 0")
    a.label(lp)
    a("buffer_load_dword v5, v4, s[4:7], s20 offen sc1")
    a("s_waitcnt vmcnt(0)")
    a("v_cmp_ne_u32 vcc, s21, v5")
    a("s_cmp_eq_u64 vcc, 0")
    a(f"s_cbranch_scc1 {ld}")
    a("s_add_u32 s22, s22, 1")
    a(f"s_cmp_lt_u32 s22, {SPIN_MAX}")
    a(f"s_cbranch_scc1 {lp}")
    a.label(ld)
    a("s_mov_b64 exec, -1")

def poll_rows16(a, k_or_phase, fixed_phase=None):
    a(f"s_and_b32 s19, s{S_I}, 1\ns_lshl_b32 s19, s19, 1\ns_lshl_b32 s23, s{S_X}, 5\ns_add_u32 s19, s19, s23")
    a("v_lshrrev_b32 v4, 1, v1\nv_lshlrev_b32 v4, 2, v4\nv_and_b32 v5, 1, v1\nv_add3_u32 v4, v4, v5, s19")
    if fixed_phase is not None: a(f"s_mov_b32 s19, {fixed_phase}")
    else: phase_id(a, 19, k_or_phase)
    poll(a, 16, 19)

def gen_prep(a):
    a.c("================ PREP ================")
    lend = a.newlabel("prep_end"); lx = a.newlabel("prep_x"); lw2 = a.newlabel("prep_w2"); lwo = a.newlabel("prep_wo")
    lw1 = a.newlabel("prep_w1"); lwc = a.newlabel("prep_wc"); lgo = a.newlabel("prep_go")
    a(f"s_cmp_ge_u32 s{S_WG}, 240\ns_cbranch_scc1 {lend}")
    a("s_load_dwordx2 s[16:17], s[0:1], 0\ns_load_dwordx2 s[28:29], s[0:1], 8\ns_load_dwordx2 s[30:31], s[0:1], 16")
    a("s_load_dwordx2 s[32:33], s[0:1], 32\ns_load_dwordx2 s[34:35], s[0:1], 40")
    a("s_waitcnt lgkmcnt(0)")
    a(f"s_cmp_ge_u32 s{S_WG}, 176\ns_cbranch_scc1 {lx}")
    a(f"s_lshl_b32 s23, s{S_WAVE}, 2")
    a(f"s_cmp_ge_u32 s{S_WG}, 120\ns_cbranch_scc1 {lw2}")
    a(f"s_cmp_ge_u32 s{S_WG}, 104\ns_cbranch_scc1 {lwo}")
    a(f"s_cmp_ge_u32 s{S_WG}, 48\ns_cbranch_scc1 {lw1}")
    a("s_mov_b32 s16, s28\ns_mov_b32 s17, s29")
    a(f"s_mov_b32 s18, {512*1536*2}\ns_mov_b32 s21, 3072\ns_mov_b32 s22, s{S_WG}")
    a(f"s_lshl_b32 s24, s22, 15\ns_add_u32 s24, s24, {WQF}\ns_lshl_b32 s25, s22, 7\ns_add_u32 s25, s25, {CSQ}")
    a(f"s_branch {lwc}")
    a.label(lw1)
    a("s_mov_b32 s16, s32\ns_mov_b32 s17, s33")
    a(f"s_mov_b32 s18, {512*1792*2}\ns_mov_b32 s21, 3584\ns_sub_u32 s22, s{S_WG}, 48")
    a(f"s_lshl_b32 s24, s22, 15\ns_add_u32 s24, s24, {W1F}\ns_lshl_b32 s25, s22, 7\ns_add_u32 s25, s25, {CS1}")
    a(f"s_branch {lwc}")
    a.label(lwo)
    a("s_mov_b32 s16, s30\ns_mov_b32 s17, s31")
    a(f"s_mov_b32 s18, {512*512*2}\ns_mov_b32 s21, 1024\ns_sub_u32 s22, s{S_WG}, 104")
    a(f"s_lshl_b32 s24, s22, 15\ns_add_u32 s24, s24, {WOF}\ns_mov_b32 s25, 0")
    a.label(lwc)
    a("s_lshl_b32 s26, s23, 10\ns_add_u32 s24, s24, s26")
    a(f"s_branch {lgo}")
    a.label(lw2)
    a("s_mov_b32 s16, s34\ns_mov_b32 s17, s35")
    a(f"s_mov_b32 s18, {1792*512*2}\ns_mov_b32 s21, 1024\ns_sub_u32 s26, s{S_WG}, 120")
    a("s_lshl_b32 s26, s26, 5\ns_add_u32 s26, s26, s23")
    a("s_mul_i32 s22, s26, 9363\ns_lshr_b32 s22, s22, 20\ns_mul_i32 s27, s22, 112\ns_sub_u32 s23, s26, s27")
    a(f"s_lshl_b32 s24, s26, 10\ns_add_u32 s24, s24, {W2F}\ns_mov_b32 s25, 0")
    a.label(lgo)
    a("s_and_b32 s17, s17, 0xffff\ns_mov_b32 s19, 0x00020000")
    a("v_lshrrev_b32 v4, 2, v1\ns_lshl_b32 s26, s23, 4\nv_add_u32 v4, s26, v4\nv_mul_lo_u32 v4, v4, s21")
    a("v_and_b32 v5, 3, v1\nv_lshlrev_b32 v5, 4, v5\ns_lshl_b32 s26, s22, 6\nv_add3_u32 v4, v4, v5, s26")
    a(f"s_lshl_b32 s27, s21, 4\ns_lshl_b32 s28, s{S_WAVE}, 12\ns_mov_b32 s29, 0")
    for j in range(4):
        a(f"s_add_u32 m0, s28, {j*1024}\ns_nop 0")
        a(f"buffer_load_dwordx4 v4, s[16:19], s29 offen lds")
        a("s_add_u32 s29, s29, s27")
    a("v_lshrrev_b32 v6, 5, v1\nv_lshlrev_b32 v6, 2, v6\nv_bfe_u32 v7, v1, 2, 2\nv_add_u32 v6, v6, v7\nv_lshlrev_b32 v6, 6, v6")
    a("v_bfe_u32 v7, v1, 4, 1\nv_lshlrev_b32 v7, 5, v7\nv_add_u32 v6, v6, v7\nv_and_b32 v7, 3, v1\nv_lshlrev_b32 v7, 3, v7\nv_add3_u32 v6, v6, v7, s28")
    a("s_waitcnt vmcnt(0)")
    for j in range(4):
        a(f"ds_read_b64_tr_b16 v[{8+4*j}:{9+4*j}], v6 offset:{j*1024}")
        a(f"ds_read_b64_tr_b16 v[{10+4*j}:{11+4*j}], v6 offset:{j*1024+512}")
    a("s_waitcnt lgkmcnt(0)")
    for j in range(4):
        a(f"buffer_store_dwordx4 v[{8+4*j}:{11+4*j}], v2, s[4:7], s24 offen offset:{j*1024} sc1")
    a(f"s_cmp_eq_u32 s25, 0\ns_cbranch_scc1 {lend}")
    a("v_mov_b32 v30, 0x3f803f80\nv_mov_b32 v31, 0\ns_nop 0")
    for j in range(16): a(f"v_dot2_f32_bf16 v31, v{8+j}, v30, v31")
    a("v_mov_b32 v32, v31\ns_nop 1\nv_permlane32_swap_b32 v31, v32\ns_nop 1\nv_add_f32 v31, v31, v32")
    a(f"s_lshl_b32 s26, s{S_WAVE}, 8\ns_add_u32 s26, s26, 32768\nv_lshlrev_b32 v33, 2, v1\nv_add_u32 v33, s26, v33")
    a("ds_write_b32 v33, v31\ns_waitcnt lgkmcnt(0)\ns_barrier")
    a(f"s_cmp_lg_u32 s{S_WAVE}, 0\ns_cbranch_scc1 {lend}")
    a("v_lshlrev_b32 v33, 2, v1")
    for w in range(8): a(f"ds_read_b32 v{34+w}, v33 offset:{32768+w*256}")
    a("s_waitcnt lgkmcnt(0)")
    for w in range(1, 8): a(f"v_add_f32 v34, v34, v{34+w}")
    set_exec(a, 32)
    a("buffer_store_dword v34, v33, s[4:7], s25 offen sc1")
    a("s_mov_b64 exec, -1")
    a(f"s_branch {lend}")
    a.label(lx)
    a(f"s_and_b32 s17, s17, 0xffff\ns_mov_b32 s18, {2048*512*2}\ns_mov_b32 s19, 0x00020000")
    a(f"s_sub_u32 s22, s{S_WG}, 176")
    a("v_and_b32 v4, 31, v1\ns_lshl_b32 s26, s22, 5\nv_add_u32 v4, s26, v4\nv_lshlrev_b32 v5, 3, v4\nv_lshlrev_b32 v4, 10, v4")
    a(f"v_lshrrev_b32 v6, 5, v1\nv_lshlrev_b32 v6, 3, v6\ns_lshl_b32 s26, s{S_WAVE}, 7\nv_add3_u32 v4, v4, v6, s26")
    for j in range(4):
        a(f"buffer_load_dwordx2 v[{8+4*j}:{9+4*j}], v4, s[16:19], 0 offen offset:{j*32}")
        a(f"buffer_load_dwordx2 v[{10+4*j}:{11+4*j}], v4, s[16:19], 0 offen offset:{j*32+16}")
    a(f"s_lshl_b32 s24, s22, 15\ns_lshl_b32 s26, s{S_WAVE}, 12\ns_add_u32 s24, s24, s26\ns_add_u32 s24, s24, {XF[0]}")
    a("v_mov_b32 v30, 0x3f803f80")
    a("s_waitcnt vmcnt(0)")
    for j in range(4):
        a(f"buffer_store_dwordx4 v[{8+4*j}:{11+4*j}], v2, s[4:7], s24 offen offset:{j*1024} sc1")
    for j in range(4): a(f"v_mov_b32 v{32+2*j}, 0\nv_mov_b32 v{33+2*j}, 0")
    a("s_nop 0")
    for j in range(4):
        for k in range(4):
            r = 8 + 4*j + k
            a(f"v_dot2_f32_bf16 v{32+2*j}, v{r}, v30, v{32+2*j}")
            a(f"v_dot2_f32_bf16 v{33+2*j}, v{r}, v{r}, v{33+2*j}")
    for k in range(8): a(f"v_mov_b32 v{40+k}, v{32+k}")
    a("s_nop 1")
    for k in range(8): a(f"v_permlane32_swap_b32 v{32+k}, v{40+k}")
    a("s_nop 1")
    for k in range(8): a(f"v_add_f32 v{32+k}, v{32+k}, v{40+k}")
    a(f"s_lshl_b32 s26, s{S_WAVE}, 16\ns_add_u32 s26, s26, {STB}")
    set_exec(a, 32)
    for j in range(4):
        a(f"buffer_store_dwordx2 v[{32+2*j}:{33+2*j}], v5, s[4:7], s26 offen sc1")
        if j < 3: a("s_add_u32 s26, s26, 16384")
    a("s_mov_b64 exec, -1")
    a.label(lend)
    stamp(a, "prep:pre_drain")
    a("s_waitcnt vmcnt(0)")
    a("s_barrier")
    def body():
        a("s_load_dwordx2 s[16:17], s[0:1], 56")
        a("s_waitcnt lgkmcnt(0)")
        a("s_and_b32 s17, s17, 0xffff\ns_mov_b32 s18, 256\ns_mov_b32 s19, 0x00020000")
        lp = a.newlabel("np"); ld = a.newlabel("npd")
        a("v_mov_b32 v5, 0\ns_mov_b32 s22, 0")
        a("s_mov_b64 exec, 1")
        a.label(lp)
        a("buffer_load_dword v4, v5, s[16:19], 0 offen sc1")
        a("s_waitcnt vmcnt(0)")
        a("v_readfirstlane_b32 s21, v4")
        a("s_nop 3")
        a(f"s_cmp_lg_u32 s21, 0\ns_cbranch_scc1 {ld}")
        a(f"s_add_u32 s22, s22, 1\ns_cmp_lt_u32 s22, {SPIN_MAX}\ns_cbranch_scc1 {lp}")
        a.label(ld)
        a(f"s_mov_b32 s{S_NONCE}, s21")
        a(f"v_or_b32 v60, s37, v60")
        a(f"v_mov_b32 v4, s21\nv_mov_b32 v5, v60\nv_mov_b32 v6, 0")
        a(f"s_lshl_b32 s20, s{S_WG}, 7\ns_add_u32 s20, s20, {FLG}")
        a("buffer_store_dwordx2 v[4:5], v6, s[4:7], s20 offen sc1")
        a("s_mov_b64 exec, -1")
        a("v_lshlrev_b32 v4, 7, v1")
        a("s_mov_b32 s22, 0")
        lp = a.newlabel("pp"); ld = a.newlabel("ppd")
        a.label(lp)
        for p in range(4):
            a(f"s_mov_b32 s23, {FLG + p*8192}")
            a(f"buffer_load_dwordx2 v[{8+2*p}:{9+2*p}], v4, s[4:7], s23 offen sc1")
        a("s_waitcnt vmcnt(0)")
        a(f"v_cmp_ne_u32 vcc, s{S_NONCE}, v8")
        for p in range(1, 4):
            a(f"v_cmp_ne_u32 s[24:25], s{S_NONCE}, v{8+2*p}\ns_or_b64 vcc, vcc, s[24:25]")
        a(f"s_cmp_eq_u64 vcc, 0\ns_cbranch_scc1 {ld}")
        a(f"s_add_u32 s22, s22, 1\ns_cmp_lt_u32 s22, {SPIN_MAX}\ns_cbranch_scc1 {lp}")
        a.label(ld)
        a("v_or_b32 v16, v9, v11\nv_or3_b32 v16, v16, v13, v15")
        a("v_and_b32 v16, 0xfffff8e0, v16")
        a("v_cmp_ne_u32 vcc, 0, v16")
        a("s_cmp_eq_u64 vcc, 0")
        a(f"s_cselect_b32 s{S_MODE}, 1, 0")
        if FORCE_GLOBAL: a(f"s_mov_b32 s{S_MODE}, 0")
        a("v_readfirstlane_b32 s23, v60")
        a(f"s_and_b32 s24, s{S_WG}, 7\ns_lshr_b32 s25, s{S_WG}, 3")
        a("s_lshr_b32 s26, s23, 8\ns_and_b32 s27, s23, 0xff")
        a(f"s_cmp_eq_u32 s{S_MODE}, 1\ns_cselect_b32 s24, s26, s24\ns_cselect_b32 s25, s27, s25")
        a(f"v_mov_b32 v4, s{S_MODE}\nv_mov_b32 v5, s24\nv_mov_b32 v6, s25\nv_mov_b32 v7, s{S_NONCE}\nv_mov_b32 v8, {LDS_BCAST}")
        a("ds_write_b128 v8, v[4:7]\ns_waitcnt lgkmcnt(0)")
    if_wave(a, "eq", SYNCW, body, "psig")
    a("s_barrier")
    a(f"v_mov_b32 v8, {LDS_BCAST}\nds_read_b128 v[4:7], v8\ns_waitcnt lgkmcnt(0)")
    a(f"v_readfirstlane_b32 s{S_MODE}, v4\nv_readfirstlane_b32 s{S_X}, v5\nv_readfirstlane_b32 s{S_I}, v6\nv_readfirstlane_b32 s{S_NONCE}, v7")
    a("s_nop 3")
    a(f"s_lshl_b32 s{S_ROLE}, s{S_X}, 5\ns_add_u32 s{S_ROLE}, s{S_ROLE}, s{S_I}")
    stamp(a, "prep:done")

def stats_issue(a, ng, vtmp, vdst, s_rt, s_st, stmp):
    h = ng // 2
    a(f"v_lshrrev_b32 v{vtmp}, 5, v1\nv_mul_u32_u24 v{vtmp}, {h*16384}, v{vtmp}\nv_and_b32 v{vdst}, 31, v1\nv_lshl_add_u32 v{vtmp}, v{vdst}, 3, v{vtmp}")
    a(f"s_lshl_b32 s{stmp}, s{s_rt}, 8\ns_add_u32 s{stmp}, s{stmp}, s{s_st}")
    for i in range(h):
        a.vmop(f"buffer_load_dwordx2 v[{vdst+2*i}:{vdst+2*i+1}], v{vtmp}, s[4:7], s{stmp} offen", "stats")
        if i < h - 1: a(f"s_add_u32 s{stmp}, s{stmp}, 16384")

def stats_finish(a, ng, vdst, vNM, vRS):
    h = ng // 2
    a.vmwait("stats")
    for i in range(1, h):
        a(f"v_pk_add_f32 v[{vdst}:{vdst+1}], v[{vdst}:{vdst+1}], v[{vdst+2*i}:{vdst+2*i+1}]")
    a(f"v_mov_b32 v{vdst+2}, v{vdst}\nv_mov_b32 v{vdst+3}, v{vdst+1}\ns_nop 1")
    a(f"v_permlane32_swap_b32 v{vdst}, v{vdst+2}\nv_permlane32_swap_b32 v{vdst+1}, v{vdst+3}\ns_nop 1")
    a(f"v_add_f32 v{vdst}, v{vdst}, v{vdst+2}\nv_add_f32 v{vdst+1}, v{vdst+1}, v{vdst+3}")
    a(f"v_mul_f32 v{vNM}, {f2u(-1.0/512):#x}, v{vdst}")
    a(f"v_mul_f32 v{vdst+1}, {f2u(1.0/512):#x}, v{vdst+1}")
    a(f"v_fma_f32 v{vdst+1}, -v{vNM}, v{vNM}, v{vdst+1}")
    a(f"v_max_f32 v{vdst+1}, 0, v{vdst+1}")
    a(f"v_add_f32 v{vdst+1}, {f2u(1e-5):#x}, v{vdst+1}")
    a(f"v_rsq_f32 v{vRS}, v{vdst+1}\ns_nop 0")

CSL = 131072
def ga_roles(a, smb, snb):
    a(f"s_and_b32 s{smb}, s{S_I}, 1\ns_lshl_b32 s{snb}, s{S_X}, 1\ns_add_u32 s{smb}, s{smb}, s{snb}\ns_lshr_b32 s{snb}, s{S_I}, 1")

def ga_wdma(a, qkv, snb, s0, s1, s2, ksteps_of_wave):
    NT = 3 if qkv else 4
    wf = WQF if qkv else W1F
    a(f"s_mul_i32 s{s0}, s{snb}, {NT*32768}\ns_add_u32 s{s0}, s{s0}, {wf}\ns_lshl_b32 s{s1}, s{S_WAVE}, 12\ns_add_u32 s{s0}, s{s0}, s{s1}")
    for t in range(NT):
        a(f"s_add_u32 m0, s{s1}, {t*32768}\ns_add_u32 s{s2}, s{s0}, {t*32768}")
        for j in range(4):
            a.vmop(f"buffer_load_dwordx4 v2, s[4:7], s{s2} offen offset:{j*1024} lds", "wpf")

def gen_ga(a, kind):
    qkv = kind == "qkv"
    NT = 3 if qkv else 4
    cs = CSQ if qkv else CS1
    NG = 32 if qkv else 16
    a.c(f"================ GA {kind} ================")
    lskip = a.newlabel("ga_skip")
    if not qkv:
        a(f"s_cmp_ge_u32 s{S_I}, 28\ns_cbranch_scc1 {lskip}")
    ga_roles(a, 13, 14)
    if qkv:
        l = a.newlabel("q0w")
        a(f"s_cmp_lg_u32 s{S_L}, 0\ns_cbranch_scc1 {l}")
        ga_wdma(a, True, 14, 16, 17, 18, None)
        a.label(l)
        a.vmreset()
    def csdma():
        a(f"s_mul_i32 s18, s14, {NT*128}\ns_add_u32 s18, s18, {cs}\nv_lshlrev_b32 v4, 2, v1")
        a(f"s_mov_b32 m0, {CSL}\ns_nop 0")
        a("buffer_load_dword v4, s[4:7], s18 offen lds")
        a(f"s_mov_b32 m0, {CSL + 256}\ns_add_u32 s18, s18, 256")
        a("buffer_load_dword v4, s[4:7], s18 offen lds")
    if_wave(a, "eq", 4, csdma)
    def do_poll():
        if qkv:
            l1 = a.newlabel("q1")
            a(f"s_cmp_eq_u32 s{S_L}, 0\ns_cbranch_scc1 {l1}")
            poll_rows16(a, None, fixed_phase=5)
            a.label(l1)
        else:
            poll_rows16(a, 2)
    if_wave(a, "eq", SYNCW, do_poll)
    stamp(a, kind + ":polled")
    a("s_waitcnt vmcnt(0)")
    a("s_barrier")
    stamp(a, kind + ":bar1")
    a.vmreset()
    lcomp = a.newlabel("ga_comp"); lend = a.newlabel("ga_end")
    a(f"s_cmp_lt_u32 s{S_WAVE}, 4\ns_cbranch_scc1 {lcomp}")
    if not qkv:
        a("s_barrier")
        w2_wpre(a)
    else:
        a("s_barrier")
    a(f"s_branch {lend}")
    a.vmreset()
    a.label(lcomp)
    VX = 16; VACC = VX + 128; VW = VACC + NT * 16; VST = VX + 96
    VNM = 4; VRS = 6; VT = 8
    assert VW + 2 * NT * 4 <= 250
    a("v_add_u32 v3, 0x10000, v2")
    a(f"s_lshl_b32 s15, s13, 2\ns_add_u32 s15, s15, s{S_WAVE}")
    if qkv:
        a(f"s_lshl_b32 s16, s{S_L}, 22")
        a(f"s_lshl_b32 s19, s{S_L}, 20\ns_add_u32 s19, s19, {STB}")
    else:
        a(f"s_lshl_b32 s16, s{S_L}, 22\ns_add_u32 s16, s16, {XF[1]}")
        a(f"s_lshl_b32 s19, s{S_L}, 20\ns_add_u32 s19, s19, {STB + ST_STRIDE}")
    a("s_lshl_b32 s17, s15, 15\ns_add_u32 s16, s16, s17")
    def xload(s):
        j = s % 4
        if j == 0 and s > 0: a("s_add_u32 s16, s16, 4096")
        a.vmop(f"buffer_load_dwordx4 v[{VX+4*s}:{VX+4*s+3}], v2, s[4:7], s16 offen offset:{j*1024}", f"x{s}")
    D = 14
    for s in range(4): xload(s)
    stats_issue(a, NG, VT, VST, 15, 19, 18)
    for s in range(4, D): xload(s)
    def rd(s, buf):
        for t in range(NT):
            off = (t * 32 + s) * 1024
            base = 2 if off < 65536 else 3
            a(f"ds_read_b128 v[{VW+(buf*NT+t)*4}:{VW+(buf*NT+t)*4+3}], v{base} offset:{off & 0xffff}")
    for s in range(33):
        if s < 32: rd(s, s & 1)
        if s >= 1:
            p = s - 1
            if p + D < 32: xload(p + D)
            if p + D == 31: a("s_barrier")
            a.vmwait(f"x{p}", f"lgkmcnt({NT if s < 32 else 0})")
            if p == 0: stamp(a, kind + ":x0")
            for t in range(NT):
                wb = VW + ((p & 1) * NT + t) * 4
                cin = "0" if p == 0 else f"v[{VACC+16*t}:{VACC+16*t+15}]"
                a(f"v_mfma_f32_32x32x16_bf16 v[{VACC+16*t}:{VACC+16*t+15}], v[{wb}:{wb+3}], v[{VX+4*p}:{VX+4*p+3}], {cin}")
            if p == 2: stats_finish(a, NG, VST, VNM, VRS)
    stamp(a, kind + ":main_end")
    a(f"v_lshrrev_b32 v{VT}, 5, v1\nv_lshlrev_b32 v{VT}, 4, v{VT}\nv_add_u32 v{VT}, {CSL}, v{VT}")
    for t in range(NT):
        for q in range(4):
            a(f"ds_read_b128 v[{VX+(t*4+q)*4}:{VX+(t*4+q)*4+3}], v{VT} offset:{t*128+q*32}")
            if (t * 4 + q) == 11: a("s_waitcnt lgkmcnt(4)")
    if qkv:
        a(f"s_mul_i32 s21, s14, {2*NT*65536}\ns_lshl_b32 s22, s15, 10\ns_add_u32 s21, s21, s22")
        a(f"s_mul_i32 s22, s{S_L}, {6*MB}\ns_add_u32 s21, s21, s22\ns_add_u32 s21, s21, {QKVF}")
        ostep = 65536
    else:
        a(f"s_mul_i32 s21, s15, {112*1024}\ns_mul_i32 s22, s14, {2*NT*1024}\ns_add_u32 s21, s21, s22")
        a(f"s_lshl_b32 s22, s{S_L}, 23\ns_add_u32 s21, s21, s22\ns_add_u32 s21, s21, {HF}")
        ostep = 1024
    a("s_waitcnt lgkmcnt(0)")
    a("s_nop 7")
    for t in range(NT):
        if qkv:
            a(f"s_mul_i32 s23, s14, {NT}\ns_add_u32 s23, s23, {t}\ns_cmp_lt_u32 s23, 16")
            a(f"s_cselect_b32 s24, {f2u(QSCALE):#x}, 1.0")
            a(f"v_mul_f32 v{VT}, s24, v{VRS}")
            vrs = VT
        else: vrs = VRS
        A = VACC + 16 * t
        for r in range(0, 16, 2):
            a(f"v_pk_fma_f32 v[{A+r}:{A+r+1}], v[{VX+t*16+r}:{VX+t*16+r+1}], v[{VNM}:{VNM+1}], v[{A+r}:{A+r+1}] op_sel_hi:[1,0,1]")
        for r in range(0, 16, 2):
            a(f"v_pk_mul_f32 v[{A+r}:{A+r+1}], v[{A+r}:{A+r+1}], v[{vrs}:{vrs+1}] op_sel_hi:[1,0]")
        P = VX + 64 + t * 8
        for i in range(8): a(f"v_cvt_pk_bf16_f32 v{P+i}, v{A+2*i}, v{A+2*i+1}")
        if not qkv:
            for i in range(8): a(f"v_pk_max_i16 v{P+i}, v{P+i}, 0")
        for u in range(2):
            a(f"s_add_u32 s23, s21, {(2*t+u)*ostep}")
            a.vmop(f"buffer_store_dwordx4 v[{P+4*u}:{P+4*u+3}], v2, s[4:7], s23 offen{' sc1' if qkv else ''}", "st")
    a.label(lend)
    if qkv:
        signal(a, 0, True)
    else:
        lA = a.newlabel("w1s"); lB = a.newlabel("w1s")
        stamp(a, "w1:pre_drain")
        a(f"s_cmp_ge_u32 s{S_WAVE}, 4\ns_cbranch_scc1 {lA}")
        a("s_waitcnt vmcnt(0)")
        a.label(lA)
        signal(a, 3, False, keep=63)
    a.label(lskip)
    if not qkv:
        l = a.newlabel("w1idle")
        a(f"s_cmp_lt_u32 s{S_I}, 28\ns_cbranch_scc1 {l}")
        if_wave(a, "ge", 4, lambda: w2_wpre(a))
        a.label(l)
    a.vmreset()

WO_KQ = 8
WO_VWR = 144
def gb_roles(a, smb, snb):
    a(f"s_and_b32 s{smb}, s{S_I}, 3\ns_lshl_b32 s{snb}, s{S_X}, 2\ns_add_u32 s{smb}, s{smb}, s{snb}\ns_lshr_b32 s{snb}, s{S_I}, 2")

def wo_wpre(a):
    KS = 32
    a(f"s_lshr_b32 s40, s{S_I}, 2")
    a(f"s_mul_i32 s41, s{S_WAVE}, {WO_KQ*1024}\ns_mul_i32 s40, s40, {2*KS*1024}\ns_add_u32 s40, s40, s41\ns_add_u32 s40, s40, {WOF}\ns_add_u32 s41, s40, {KS*1024}")
    for s in range(WO_KQ):
        if s == 4: a("s_add_u32 s40, s40, 4096\ns_add_u32 s41, s41, 4096")
        for bi, sb in enumerate((40, 41)):
            a.vmop(f"buffer_load_dwordx4 v[{WO_VWR+8*s+4*bi}:{WO_VWR+8*s+4*bi+3}], v2, s[4:7], s{sb} offen offset:{(s%4)*1024}", "wo_w")

def gen_att(a):
    a.c("================ ATT ================")
    KL = 0; VL = 65536; ONES = 131072; EXL = 139264; UNR = 4
    a(f"s_mov_b32 s13, s{S_I}\ns_mov_b32 s14, s{S_X}")
    a("v_mov_b32 v4, 0x3f803f80\nv_mov_b32 v5, 0x3f803f80\nv_mov_b32 v6, 0x3f803f80\nv_mov_b32 v7, 0x3f803f80")
    a(f"v_lshlrev_b32 v12, 4, v0\nv_add_u32 v12, {ONES}, v12\nds_write_b128 v12, v[4:7]")
    def do_poll():
        a("s_lshr_b32 s16, s13, 1")
        a("s_add_u32 s17, s16, 16\ns_mul_i32 s17, s17, 171\ns_lshr_b32 s17, s17, 9")
        a("s_add_u32 s18, s16, 32\ns_mul_i32 s18, s18, 171\ns_lshr_b32 s18, s18, 9")
        a("s_mul_i32 s19, s16, 171\ns_lshr_b32 s19, s19, 9")
        for v in range(48): assert (v * 171) >> 9 == v // 3
        a("v_bfe_u32 v8, v1, 1, 3\nv_mov_b32 v9, s17\nv_mov_b32 v10, s18")
        a("v_cmp_le_u32 vcc, 16, v1\ns_nop 1\nv_cndmask_b32 v9, v9, v10, vcc")
        a(f"v_mov_b32 v10, s19\nv_mov_b32 v11, s{S_X}")
        a("v_cmp_le_u32 vcc, 32, v1\ns_nop 1\nv_cndmask_b32 v9, v9, v10, vcc\nv_cndmask_b32 v8, v8, v11, vcc")
        a("v_and_b32 v4, 1, v1\nv_lshl_add_u32 v4, v9, 1, v4\nv_lshl_add_u32 v4, v8, 5, v4")
        phase_id(a, 19, 0)
        poll(a, 34, 19)
    if_wave(a, "eq", SYNCW, do_poll)
    a("s_waitcnt lgkmcnt(0)")
    a("s_barrier")
    stamp(a, "att:bar1")
    a.vmreset()
    a(f"s_and_b32 s15, s{S_WAVE}, 3\ns_lshr_b32 s16, s{S_WAVE}, 2")
    a("s_lshl_b32 s17, s14, 3\ns_lshl_b32 s18, s15, 1\ns_add_u32 s17, s17, s18")
    a(f"s_mul_i32 s18, s{S_L}, {6*MB}\ns_add_u32 s18, s18, {QKVF}\ns_lshl_b32 s19, s13, 16\ns_add_u32 s18, s18, s19")
    VQ = [8, 12]
    a("v_lshrrev_b32 v3, 1, v1\nv_and_b32 v4, 1, v1\nv_lshl_add_u32 v3, v4, 5, v3\nv_lshlrev_b32 v3, 4, v3")
    a("s_lshl_b32 s20, s16, 5\ns_add_u32 s20, s20, s15\ns_lshl_b32 s20, s20, 10")
    a(f"s_add_u32 s21, s18, s20\ns_add_u32 s22, s21, {64*65536}\ns_add_u32 s21, s21, {32*65536}")
    def chunk(c):
        a(f"s_add_u32 m0, s20, {KL + c*4096}\ns_add_u32 s19, s21, {c*4096}")
        a.vmop(f"buffer_load_dwordx4 v2, s[4:7], s19 offen lds", f"c{c}")
        a(f"s_add_u32 m0, s20, {VL + c*4096}\ns_add_u32 s19, s22, {c*4096}")
        a.vmop(f"buffer_load_dwordx4 v3, s[4:7], s19 offen lds", f"c{c}")
    chunk(0)
    a("s_lshl_b32 s19, s17, 10\ns_add_u32 s19, s19, s18")
    a.vmop(f"buffer_load_dwordx4 v[8:11], v2, s[4:7], s19 offen", "q")
    a.vmop(f"buffer_load_dwordx4 v[12:15], v2, s[4:7], s19 offen offset:1024", "q")
    chunk(1); chunk(2)
    a("s_lshl_b32 s23, s16, 15\nv_add_u32 v16, s23, v2")
    a("v_lshrrev_b32 v17, 5, v1\nv_lshlrev_b32 v17, 2, v17\nv_bfe_u32 v4, v1, 2, 2\nv_add_u32 v17, v17, v4\nv_lshlrev_b32 v17, 5, v17")
    a("v_and_b32 v4, 1, v1\nv_lshl_add_u32 v17, v4, 4, v17\nv_bfe_u32 v4, v1, 1, 1\nv_lshl_add_u32 v17, v4, 3, v17")
    a(f"v_mov_b32 v19, v17")
    a(f"s_add_u32 s23, s23, {VL}\nv_add_u32 v17, s23, v17")
    a(f"v_lshrrev_b32 v4, 5, v1\nv_xor_b32 v4, 1, v4\nv_lshlrev_b32 v4, 7, v4\nv_add_u32 v4, {ONES}, v4")
    a(f"v_bfe_u32 v5, v1, 4, 1\nv_cmp_eq_u32 vcc, 1, v5\nv_mov_b32 v18, {UNR*1024}\nv_mov_b32 v6, 0")
    a(f"v_add_u32 v19, {VL}, v19")
    a("v_cndmask_b32 v17, v17, v4, vcc\nv_cndmask_b32 v18, v18, v6, vcc\nv_cndmask_b32 v19, v19, v4, vcc")
    VS = [32, 48]; VP = [64, 72]; VO = [80, 96]; VK = [112, 116]; VV = [120, 128]
    def rdK(Tl, buf): a(f"ds_read_b128 v[{VK[buf]}:{VK[buf]+3}], v16 offset:{KL + Tl*1024}")
    def rdV(Tl, buf, reg=17):
        for t in range(2):
            for u in range(2):
                d = VV[buf] + 4*t + 2*u
                a(f"ds_read_b64_tr_b16 v[{d}:{d+1}], v{reg} offset:{Tl*1024 + t*512 + u*256}")
    def qk(q, kb, c="0"): a(f"v_mfma_f32_32x32x16_bf16 v[{VS[q]}:{VS[q]+15}], v[{VK[kb]}:{VK[kb]+3}], v[{VQ[q]}:{VQ[q]+3}], {c}")
    def pv(q, vb, t): a(f"v_mfma_f32_32x32x16_bf16 v[{VO[q]}:{VO[q]+15}], v[{VV[vb]+4*t}:{VV[vb]+4*t+3}], v[{VP[q]+4*t}:{VP[q]+4*t+3}], v[{VO[q]}:{VO[q]+15}]")
    def ex(q, lo, hi):
        for i in range(lo, hi): a(f"v_exp_f32 v{VS[q]+i}, v{VS[q]+i}")
    def cv(q, lo, hi):
        for i in range(lo, hi): a(f"v_cvt_pk_bf16_f32 v{VP[q]+i}, v{VS[q]+2*i}, v{VS[q]+2*i+1}")
    for q in range(2):
        for r in range(16): a(f"v_mov_b32 v{VO[q]+r}, 0")
    for r in range(8): a(f"v_mov_b32 v{VP[1]+r}, 0\nv_mov_b32 v{VV[1]+r}, 0")
    a.vmwait(["q", "c0", "c1"])
    stamp(a, "att:c01")
    a("s_barrier")
    for c in range(3, 6): chunk(c)
    rdK(0, 0)
    a("s_waitcnt lgkmcnt(0)")
    qk(0, 0)
    a("s_nop 7\ns_nop 7")
    def window(q, m1, m2, m3, pre=None):
        if m1: m1()
        if pre: pre()
        ex(q, 0, 8)
        if m2: m2()
        cv(q, 0, 4)
        ex(q, 8, 12)
        if m3: m3()
        ex(q, 12, 16)
        cv(q, 4, 8)
    def tile(Tl, last):
        cur = Tl & 1; nx = cur ^ 1
        fin = last and Tl == UNR - 1
        def preA():
            if not fin: rdK(Tl + 1, nx)
            rdV(Tl, cur)
        window(0, lambda: qk(1, cur), lambda: pv(1, nx, 0), lambda: pv(1, nx, 1), preA)
        def m1():
            a("s_waitcnt lgkmcnt(0)")
            if not fin: qk(0, nx)
        window(1, m1, lambda: pv(0, cur, 0), lambda: pv(0, cur, 1))
    def group(last=False):
        for Tl in range(UNR): tile(Tl, last)
        if not last:
            a(f"v_add_u32 v16, {UNR*1024}, v16\nv_add_u32 v17, v17, v18")
    a("s_setprio 3")
    group()
    a.vmwait("c2"); a("s_barrier")
    for c in range(6, 8): chunk(c)
    group()
    a.vmwait_all(); a("s_barrier")
    stamp(a, "att:g2")
    if_wave(a, "lt", 4, lambda: wo_wpre(a))
    a.vmreset()
    a("s_mov_b32 s24, 0")
    ll = a.newlabel("att_loop")
    a.label(ll)
    for val, pr in ((0, 2), (2, 1), (4, 0)):
        l = a.newlabel("pr")
        a(f"s_cmp_lg_u32 s24, {val}\ns_cbranch_scc1 {l}\ns_setprio {pr}")
        a.label(l)
    group()
    a(f"s_add_u32 s24, s24, 1\ns_cmp_lt_u32 s24, 5\ns_cbranch_scc1 {ll}")
    group(last=True)
    a("s_nop 1")
    pv(1, (UNR - 1) & 1, 0); pv(1, (UNR - 1) & 1, 1)
    a("s_setprio 0")
    stamp(a, "att:loop_end")
    a("s_nop 7\ns_nop 7")
    a(f"s_mul_i32 s23, s{S_WAVE}, 3072\ns_add_u32 s23, s23, {EXL}\nv_add_u32 v4, s23, v2")
    a(f"s_xor_b32 s24, s{S_WAVE}, 4\ns_mul_i32 s24, s24, 3072\ns_add_u32 s24, s24, {EXL}\nv_add_u32 v5, s24, v2")
    l1 = a.newlabel("ex1"); l2 = a.newlabel("ex2")
    a(f"s_cmp_lg_u32 s16, 0\ns_cbranch_scc1 {l1}")
    for j in range(3): a(f"ds_write_b128 v4, v[{VO[1]+4*j}:{VO[1]+4*j+3}] offset:{j*1024}")
    a(f"s_branch {l2}")
    a.label(l1)
    for j in range(3): a(f"ds_write_b128 v4, v[{VO[0]+4*j}:{VO[0]+4*j+3}] offset:{j*1024}")
    for r in range(12): a(f"v_mov_b32 v{VO[0]+r}, v{VO[1]+r}")
    for r in range(4): a(f"v_mov_b32 v{VQ[0]+r}, v{VQ[1]+r}")
    a.label(l2)
    a("s_waitcnt lgkmcnt(0)\ns_barrier")
    for j in range(3): a(f"ds_read_b128 v[{VS[0]+4*j}:{VS[0]+4*j+3}], v5 offset:{j*1024}")
    a("s_waitcnt lgkmcnt(0)")
    for r in range(9): a(f"v_add_f32 v{VO[0]+r}, v{VO[0]+r}, v{VS[0]+r}")
    lok = a.newlabel("att_ok")
    O = VO[0]
    a(f"v_max3_f32 v4, |v{O}|, |v{O+1}|, |v{O+2}|\nv_max3_f32 v5, |v{O+3}|, |v{O+4}|, |v{O+5}|\nv_max3_f32 v4, |v{O+6}|, |v{O+7}|, v4\nv_max_f32 v4, v4, v5")
    a(f"s_mov_b32 s23, {f2u(2.0**-40):#x}\ns_mov_b32 s24, {f2u(2.0**40):#x}\ns_mov_b32 s25, {f2u(2.0**120):#x}")
    a(f"v_cmp_nge_f32 vcc, v{O+8}, s23")
    a(f"v_cmp_nle_f32 s[26:27], v{O+8}, s24")
    a("s_or_b64 vcc, vcc, s[26:27]")
    a("v_cmp_nle_f32 s[26:27], v4, s25")
    a("s_or_b64 vcc, vcc, s[26:27]")
    a(f"s_cmp_eq_u64 vcc, 0\ns_cbranch_scc1 {lok}")
    a.c("slow path")
    M = 20; C = VS[1]
    a(f"v_mov_b32 v{M}, 0xff800000\nv_mov_b32 v16, v2\ns_mov_b32 s24, 0")
    lp = a.newlabel("sp1")
    a.label(lp)
    rdK(0, 0)
    a("s_waitcnt lgkmcnt(0)")
    qk(0, 0)
    a("s_nop 7\ns_nop 7")
    for r in range(0, 16, 2): a(f"v_max3_f32 v{M}, v{VS[0]+r}, v{VS[0]+r+1}, v{M}")
    a(f"v_add_u32 v16, 1024, v16\ns_add_u32 s24, s24, 1\ns_cmp_lt_u32 s24, 64\ns_cbranch_scc1 {lp}")
    a(f"v_mov_b32 v{M+1}, v{M}\ns_nop 1\nv_permlane32_swap_b32 v{M}, v{M+1}\ns_nop 1\nv_max_f32 v{M}, v{M}, v{M+1}")
    for r in range(16): a(f"v_sub_f32 v{C+r}, 0, v{M}")
    for r in range(16): a(f"v_mov_b32 v{O+r}, 0")
    a("v_mov_b32 v16, v2\ns_mov_b32 s24, 0")
    a(f"v_lshrrev_b32 v21, 2, v18")
    lp = a.newlabel("sp2")
    a.label(lp)
    rdK(0, 0); rdV(0, 0, reg=19)
    a("s_waitcnt lgkmcnt(0)")
    qk(0, 0, c=f"v[{C}:{C+15}]")
    a("s_nop 7\ns_nop 7")
    ex(0, 0, 16)
    a("s_nop 0")
    cv(0, 0, 8)
    a("s_nop 1")
    pv(0, 0, 0); pv(0, 0, 1)
    a(f"v_add_u32 v16, 1024, v16\nv_add_u32 v19, v19, v21\ns_add_u32 s24, s24, 1\ns_cmp_lt_u32 s24, 64\ns_cbranch_scc1 {lp}")
    a("s_nop 7\ns_nop 7")
    a.label(lok)
    a(f"v_rcp_f32 v4, v{O+8}\ns_nop 0")
    for r in range(8): a(f"v_mul_f32 v{O+r}, v4, v{O+r}")
    for i in range(4): a(f"v_cvt_pk_bf16_f32 v{VP[0]+i}, v{O+2*i}, v{O+2*i+1}")
    a("s_add_u32 s17, s17, s16\ns_lshl_b32 s17, s17, 15\ns_lshl_b32 s19, s13, 10\ns_add_u32 s17, s17, s19")
    a(f"s_lshl_b32 s19, s{S_L}, 21\ns_add_u32 s17, s17, s19\ns_add_u32 s17, s17, {OF}")
    a.vmop(f"buffer_store_dwordx4 v[{VP[0]}:{VP[0]+3}], v2, s[4:7], s17 offen", "st")
    signal(a, 1, False)
    a.vmreset()


def gen_wo(a):
    a.c("================ WO ================")
    KS = 32; KQ = WO_KQ
    EX = 131072
    gb_roles(a, 13, 14)
    VB = 16; VWR = WO_VWR; VACC = 208 - 128 + 0
    VACC = VB + KQ * 8
    VR = 8
    def do_poll():
        a(f"s_lshl_b32 s19, s{S_X}, 5\nv_add_u32 v4, s19, v1")
        phase_id(a, 19, 1)
        poll(a, 32, 19)
    if_wave(a, "eq", SYNCW, do_poll)
    a("s_barrier")
    stamp(a, "wo:bar1")
    lend = a.newlabel("wo_end"); lidle = a.newlabel("wo_idle")
    a(f"s_cmp_ge_u32 s{S_WAVE}, 4\ns_cbranch_scc1 {lidle}")
    a(f"s_mul_i32 s15, s{S_WAVE}, {KQ*1024}")
    a(f"s_mul_i32 s16, s13, {2*KS*1024}\ns_add_u32 s16, s16, s15\ns_lshl_b32 s17, s{S_L}, 21\ns_add_u32 s16, s16, s17\ns_add_u32 s16, s16, {OF}\ns_add_u32 s17, s16, {KS*1024}")
    for s in range(KQ):
        if s == 4: a("s_add_u32 s16, s16, 4096\ns_add_u32 s17, s17, 4096")
        for ai, sb in enumerate((16, 17)):
            a.vmop(f"buffer_load_dwordx4 v[{VB+8*s+4*ai}:{VB+8*s+4*ai+3}], v2, s[4:7], s{sb} offen offset:{(s%4)*1024}", f"k{s}")
    a(f"s_lshr_b32 s20, s{S_WAVE}, 1\ns_and_b32 s21, s{S_WAVE}, 1\ns_lshl_b32 s22, s13, 1\ns_add_u32 s20, s22, s20\ns_lshl_b32 s22, s14, 1\ns_add_u32 s21, s22, s21")
    a("s_lshl_b32 s22, s20, 15\ns_lshl_b32 s23, s21, 11\ns_add_u32 s22, s22, s23")
    a(f"s_lshl_b32 s23, s{S_L}, 22\ns_add_u32 s23, s23, s22")
    a.vmop(f"buffer_load_dwordx4 v[{VR}:{VR+3}], v2, s[4:7], s23 offen", "res")
    a.vmop(f"buffer_load_dwordx4 v[{VR+4}:{VR+7}], v2, s[4:7], s23 offen offset:1024", "res")
    a("s_barrier")
    for s in range(KQ):
        a.vmwait(f"k{s}")
        if s == 0: stamp(a, "wo:x0")
        for ai in range(2):
            for bi in range(2):
                acc = VACC + (ai * 2 + bi) * 16
                cin = "0" if s == 0 else f"v[{acc}:{acc+15}]"
                a(f"v_mfma_f32_32x32x16_bf16 v[{acc}:{acc+15}], v[{VWR+8*s+4*bi}:{VWR+8*s+4*bi+3}], v[{VB+8*s+4*ai}:{VB+8*s+4*ai+3}], {cin}")
    a.vmwait("res")
    stamp(a, "wo:main_end")
    a("s_nop 7\ns_nop 3")
    a(f"s_lshl_b32 s26, s{S_WAVE}, 13\ns_add_u32 s26, s26, {EX}\nv_add_u32 v3, s26, v2")
    a(f"s_xor_b32 s27, s{S_WAVE}, 2\ns_lshl_b32 s27, s27, 13\ns_add_u32 s27, s27, {EX}\nv_add_u32 v4, s27, v2")
    T = VB
    K0 = VB + 32
    la = a.newlabel("wo_a"); lb = a.newlabel("wo_b")
    a(f"s_and_b32 s28, s{S_WAVE}, 2\ns_cmp_lg_u32 s28, 0\ns_cbranch_scc1 {la}")
    for q in range(8): a(f"ds_write_b128 v3, v[{VACC+32+4*q}:{VACC+32+4*q+3}] offset:{q*1024}")
    for r in range(32): a(f"v_mov_b32 v{K0+r}, v{VACC+r}")
    a(f"s_branch {lb}")
    a.label(la)
    for q in range(8): a(f"ds_write_b128 v3, v[{VACC+4*q}:{VACC+4*q+3}] offset:{q*1024}")
    for r in range(32): a(f"v_mov_b32 v{K0+r}, v{VACC+32+r}")
    a.label(lb)
    a("s_waitcnt lgkmcnt(0)\ns_barrier")
    for q in range(8): a(f"ds_read_b128 v[{T+4*q}:{T+4*q+3}], v4 offset:{q*1024}")
    a("s_waitcnt lgkmcnt(0)")
    for r in range(0, 32, 2): a(f"v_pk_add_f32 v[{K0+r}:{K0+r+1}], v[{K0+r}:{K0+r+1}], v[{T+r}:{T+r+1}]")
    a(f"s_xor_b32 s27, s{S_WAVE}, 3\ns_lshl_b32 s27, s27, 13\ns_add_u32 s27, s27, {EX}\nv_add_u32 v5, s27, v2")
    la = a.newlabel("wo_c"); lb = a.newlabel("wo_d")
    F = VACC
    a(f"s_and_b32 s28, s{S_WAVE}, 1\ns_cmp_lg_u32 s28, 0\ns_cbranch_scc1 {la}")
    for q in range(4): a(f"ds_write_b128 v4, v[{K0+16+4*q}:{K0+16+4*q+3}] offset:{q*1024}")
    for r in range(16): a(f"v_mov_b32 v{F+r}, v{K0+r}")
    a(f"s_branch {lb}")
    a.label(la)
    for q in range(4): a(f"ds_write_b128 v4, v[{K0+4*q}:{K0+4*q+3}] offset:{q*1024}")
    for r in range(16): a(f"v_mov_b32 v{F+r}, v{K0+16+r}")
    a.label(lb)
    a("s_waitcnt lgkmcnt(0)\ns_barrier")
    for q in range(4): a(f"ds_read_b128 v[{T+4*q}:{T+4*q+3}], v5 offset:{q*1024}")
    for i in range(8):
        a(f"v_lshlrev_b32 v{T+16+2*i}, 16, v{VR+i}\nv_and_b32 v{T+17+2*i}, 0xffff0000, v{VR+i}")
    for r in range(0, 16, 2): a(f"v_pk_add_f32 v[{F+r}:{F+r+1}], v[{F+r}:{F+r+1}], v[{T+16+r}:{T+17+r}]")
    a("s_waitcnt lgkmcnt(0)")
    for r in range(0, 16, 2): a(f"v_pk_add_f32 v[{F+r}:{F+r+1}], v[{F+r}:{F+r+1}], v[{T+r}:{T+r+1}]")
    P = T + 32
    for i in range(8): a(f"v_cvt_pk_bf16_f32 v{P+i}, v{F+2*i}, v{F+2*i+1}")
    a(f"s_lshl_b32 s23, s{S_L}, 22\ns_add_u32 s23, s23, s22\ns_add_u32 s23, s23, {XF[1]}")
    a.vmop(f"buffer_store_dwordx4 v[{P}:{P+3}], v2, s[4:7], s23 offen", "st")
    a.vmop(f"buffer_store_dwordx4 v[{P+4}:{P+7}], v2, s[4:7], s23 offen offset:1024", "st")
    emit_stats(a, P, 8, P + 8, 21, 20, f"s_lshl_b32 s27, s{S_L}, 20\ns_add_u32 s26, s26, s27\ns_add_u32 s26, s26, {STB + ST_STRIDE}")
    a("s_waitcnt vmcnt(0)")
    a(f"s_branch {lend}")
    a.label(lidle)
    a("s_barrier")
    a.vmreset()
    l = a.newlabel("w1d")
    a(f"s_cmp_ge_u32 s{S_I}, 28\ns_cbranch_scc1 {l}")
    a(f"s_lshr_b32 s30, s{S_I}, 1")
    a(f"s_mul_i32 s31, s30, {4*32768}\ns_add_u32 s31, s31, {W1F}\ns_sub_u32 s32, s{S_WAVE}, 4\ns_lshl_b32 s32, s32, 13\ns_add_u32 s31, s31, s32")
    for t in range(4):
        for hh in range(2):
            a(f"s_add_u32 m0, s32, {t*32768 + hh*4096}\ns_add_u32 s33, s31, {t*32768 + hh*4096}")
            for j in range(4):
                a.vmop(f"buffer_load_dwordx4 v2, s[4:7], s33 offen offset:{j*1024} lds", "wpf")
    a.label(l)
    a("s_barrier\ns_barrier")
    a.label(lend)
    signal(a, 2, False, keep=63)
    a.vmreset()

def emit_stats(a, P, n, S, s_g, s_rt, base_txt):
    a(f"v_mov_b32 v{S+4}, 0x3f803f80\nv_mov_b32 v{S}, 0\nv_mov_b32 v{S+1}, 0\ns_nop 0")
    for i in range(n):
        a(f"v_dot2_f32_bf16 v{S}, v{P+i}, v{S+4}, v{S}\nv_dot2_f32_bf16 v{S+1}, v{P+i}, v{P+i}, v{S+1}")
    a(f"v_mov_b32 v{S+2}, v{S}\nv_mov_b32 v{S+3}, v{S+1}\ns_nop 1")
    a(f"v_permlane32_swap_b32 v{S}, v{S+2}\nv_permlane32_swap_b32 v{S+1}, v{S+3}\ns_nop 1")
    a(f"v_add_f32 v{S}, v{S}, v{S+2}\nv_add_f32 v{S+1}, v{S+1}, v{S+3}")
    a(f"s_lshl_b32 s26, s{s_g}, 14\ns_lshl_b32 s27, s{s_rt}, 8\ns_add_u32 s26, s26, s27")
    a(base_txt)
    a(f"v_lshlrev_b32 v{S+5}, 3, v1")
    set_exec(a, 32)
    a.vmop(f"buffer_store_dwordx2 v[{S}:{S+1}], v{S+5}, s[4:7], s26 offen", "st")
    a("s_mov_b64 exec, -1")

W2_KS = 112; W2_KE = 14; W2_VWR = 16
def w2_wpre(a):
    a(f"s_lshr_b32 s40, s{S_I}, 2")
    a(f"s_mul_i32 s41, s{S_WAVE}, {W2_KE*1024}\ns_mul_i32 s40, s40, {2*W2_KS*1024}\ns_add_u32 s40, s40, s41\ns_add_u32 s40, s40, {W2F}\ns_add_u32 s41, s40, {W2_KS*1024}")
    for s in range(W2_KE):
        if s % 4 == 0 and s > 0: a("s_add_u32 s40, s40, 4096\ns_add_u32 s41, s41, 4096")
        for bi, sb in enumerate((40, 41)):
            a.vmop(f"buffer_load_dwordx4 v[{W2_VWR+8*s+4*bi}:{W2_VWR+8*s+4*bi+3}], v2, s[4:7], s{sb} offen offset:{(s%4)*1024}", "w2w")

def gen_w2(a):
    a.c("================ W2 ================")
    KS = W2_KS; KE = W2_KE; VWR = W2_VWR
    EX = 98304
    gb_roles(a, 13, 14)
    VB = VWR + KE * 8; D = 7; VACC = VB + D * 8; VR = 8
    assert VACC + 64 <= 250
    def do_poll():
        a(f"s_bfe_u32 s19, s{S_I}, 0x10001\ns_lshl_b32 s23, s{S_X}, 5\ns_add_u32 s19, s19, s23\nv_lshlrev_b32 v4, 1, v1\nv_add_u32 v4, s19, v4")
        phase_id(a, 20, 3)
        a("s_mov_b32 s28, s20")
        poll(a, 14, 28)
    if_wave(a, "eq", SYNCW, do_poll)
    stamp(a, "w2:polled")
    a("s_barrier")
    stamp(a, "w2:bar1")
    a.vmreset()
    a(f"s_mul_i32 s15, s{S_WAVE}, {KE*1024}")
    a(f"s_mul_i32 s16, s13, {2*KS*1024}\ns_add_u32 s16, s16, s15\ns_lshl_b32 s17, s{S_L}, 23\ns_add_u32 s16, s16, s17\ns_add_u32 s16, s16, {HF}\ns_add_u32 s17, s16, {KS*1024}")
    def xload(s):
        b = VB + (s % D) * 8
        if s % 4 == 0 and s > 0: a("s_add_u32 s16, s16, 4096\ns_add_u32 s17, s17, 4096")
        for ai, sb in enumerate((16, 17)):
            a.vmop(f"buffer_load_dwordx4 v[{b+4*ai}:{b+4*ai+3}], v2, s[4:7], s{sb} offen offset:{(s%4)*1024}", f"k{s}")
    for s in range(2): xload(s)
    lw = a.newlabel("w2w")
    a(f"s_cmp_ge_u32 s{S_WAVE}, 4\ns_cbranch_scc1 L_w2_hi")
    saved = list(a.vm)
    def main_path2(low):
        if low: w2_wpre(a)
        for s in range(2, D): xload(s)
        a(f"s_lshr_b32 s20, s{S_WAVE}, 2\ns_lshl_b32 s22, s13, 1\ns_add_u32 s20, s22, s20")
        a(f"s_and_b32 s21, s{S_WAVE}, 3\ns_lshl_b32 s22, s14, 2\ns_add_u32 s21, s22, s21")
        a("s_lshl_b32 s22, s20, 15\ns_lshl_b32 s23, s21, 10\ns_add_u32 s22, s22, s23")
        a(f"s_lshl_b32 s23, s{S_L}, 22\ns_add_u32 s23, s23, s22\ns_add_u32 s23, s23, {XF[1]}")
        a.vmop(f"buffer_load_dwordx4 v[{VR}:{VR+3}], v2, s[4:7], s23 offen", "res")
        for s in range(KE):
            if low and s == 0: a.vmwait(["k0", "k1", "w2w"])
            else: a.vmwait(f"k{s}")
            if s == 0: stamp(a, "w2:x0")
            b = VB + (s % D) * 8
            for ai in range(2):
                for bi in range(2):
                    acc = VACC + (ai * 2 + bi) * 16
                    cin = "0" if s == 0 else f"v[{acc}:{acc+15}]"
                    a(f"v_mfma_f32_32x32x16_bf16 v[{acc}:{acc+15}], v[{VWR+8*s+4*bi}:{VWR+8*s+4*bi+3}], v[{b+4*ai}:{b+4*ai+3}], {cin}")
            if s + D < KE: xload(s + D)
            if s == KE - 2: a.vmwait(["res", f"k{KE-1}"])
    main_path2(True)
    a("s_branch L_w2_join")
    a.label("L_w2_hi")
    a.vm = saved
    main_path2(False)
    a.label("L_w2_join")
    a.vmreset()
    stamp(a, "w2:main_end")
    l = a.newlabel("qpf")
    a(f"s_cmp_lg_u32 s{S_L}, 0\ns_cbranch_scc1 {l}")
    a(f"s_lshr_b32 s30, s{S_I}, 1")
    ga_wdma(a, True, 30, 31, 32, 33, None)
    a.label(l)
    a.vmreset()
    a("s_nop 7\ns_nop 3")
    H = lambda d: VACC + d * 8
    T = VWR
    K = VWR + 32
    a(f"s_lshl_b32 s26, s{S_WAVE}, 13\ns_add_u32 s26, s26, {EX}\nv_add_u32 v3, s26, v2")
    a(f"s_xor_b32 s27, s{S_WAVE}, 4\ns_lshl_b32 s27, s27, 13\ns_add_u32 s27, s27, {EX}\nv_add_u32 v4, s27, v2")
    la = a.newlabel("x1a"); lb = a.newlabel("x1b")
    a(f"s_and_b32 s28, s{S_WAVE}, 4\ns_cmp_lg_u32 s28, 0\ns_cbranch_scc1 {la}")
    for q in range(8): a(f"ds_write_b128 v3, v[{H(4)+4*q}:{H(4)+4*q+3}] offset:{q*1024}")
    for r in range(32): a(f"v_mov_b32 v{K+r}, v{H(0)+r}")
    a(f"s_branch {lb}")
    a.label(la)
    for q in range(8): a(f"ds_write_b128 v3, v[{H(0)+4*q}:{H(0)+4*q+3}] offset:{q*1024}")
    for r in range(32): a(f"v_mov_b32 v{K+r}, v{H(4)+r}")
    a.label(lb)
    a("s_waitcnt lgkmcnt(0)\ns_barrier")
    for q in range(8): a(f"ds_read_b128 v[{T+4*q}:{T+4*q+3}], v4 offset:{q*1024}")
    a("s_waitcnt lgkmcnt(0)")
    for r in range(0, 32, 2): a(f"v_pk_add_f32 v[{K+r}:{K+r+1}], v[{K+r}:{K+r+1}], v[{T+r}:{T+r+1}]")
    a(f"s_xor_b32 s27, s{S_WAVE}, 6\ns_lshl_b32 s27, s27, 13\ns_add_u32 s27, s27, {EX}\nv_add_u32 v5, s27, v2")
    la = a.newlabel("x2a"); lb = a.newlabel("x2b")
    K2 = VACC
    a(f"s_and_b32 s28, s{S_WAVE}, 2\ns_cmp_lg_u32 s28, 0\ns_cbranch_scc1 {la}")
    for q in range(4): a(f"ds_write_b128 v4, v[{K+16+4*q}:{K+16+4*q+3}] offset:{q*1024}")
    for r in range(16): a(f"v_mov_b32 v{K2+r}, v{K+r}")
    a(f"s_branch {lb}")
    a.label(la)
    for q in range(4): a(f"ds_write_b128 v4, v[{K+4*q}:{K+4*q+3}] offset:{q*1024}")
    for r in range(16): a(f"v_mov_b32 v{K2+r}, v{K+16+r}")
    a.label(lb)
    a("s_waitcnt lgkmcnt(0)\ns_barrier")
    for q in range(4): a(f"ds_read_b128 v[{T+4*q}:{T+4*q+3}], v5 offset:{q*1024}")
    a("s_waitcnt lgkmcnt(0)")
    for r in range(0, 16, 2): a(f"v_pk_add_f32 v[{K2+r}:{K2+r+1}], v[{K2+r}:{K2+r+1}], v[{T+r}:{T+r+1}]")
    a(f"s_xor_b32 s27, s{S_WAVE}, 7\ns_lshl_b32 s27, s27, 13\ns_add_u32 s27, s27, {EX}\nv_add_u32 v4, s27, v2")
    la = a.newlabel("x3a"); lb = a.newlabel("x3b")
    F = VACC + 16
    a(f"s_and_b32 s28, s{S_WAVE}, 1\ns_cmp_lg_u32 s28, 0\ns_cbranch_scc1 {la}")
    for q in range(2): a(f"ds_write_b128 v5, v[{K2+8+4*q}:{K2+8+4*q+3}] offset:{q*1024}")
    for r in range(8): a(f"v_mov_b32 v{F+r}, v{K2+r}")
    a(f"s_branch {lb}")
    a.label(la)
    for q in range(2): a(f"ds_write_b128 v5, v[{K2+4*q}:{K2+4*q+3}] offset:{q*1024}")
    for r in range(8): a(f"v_mov_b32 v{F+r}, v{K2+8+r}")
    a.label(lb)
    a("s_waitcnt lgkmcnt(0)\ns_barrier")
    for q in range(2): a(f"ds_read_b128 v[{T+4*q}:{T+4*q+3}], v4 offset:{q*1024}")
    for i in range(4):
        a(f"v_lshlrev_b32 v{T+8+2*i}, 16, v{VR+i}\nv_and_b32 v{T+9+2*i}, 0xffff0000, v{VR+i}")
    for r in range(0, 8, 2): a(f"v_pk_add_f32 v[{F+r}:{F+r+1}], v[{F+r}:{F+r+1}], v[{T+8+r}:{T+9+r}]")
    a("s_waitcnt lgkmcnt(0)")
    for r in range(0, 8, 2): a(f"v_pk_add_f32 v[{F+r}:{F+r+1}], v[{F+r}:{F+r+1}], v[{T+r}:{T+r+1}]")
    P = T + 16
    for i in range(4): a(f"v_cvt_pk_bf16_f32 v{P+i}, v{F+2*i}, v{F+2*i+1}")
    lfin = a.newlabel("w2_fin"); lend = a.newlabel("w2_end")
    a(f"s_cmp_lg_u32 s{S_L}, 0\ns_cbranch_scc1 {lfin}")
    a(f"s_add_u32 s23, s22, {XF[2]}")
    a(f"buffer_store_dwordx4 v[{P}:{P+3}], v2, s[4:7], s23 offen")
    emit_stats(a, P, 4, P + 4, 21, 20, f"s_add_u32 s26, s26, {STB + 2*ST_STRIDE}")
    signal(a, 4, False)
    a(f"s_branch {lend}")
    a.label(lfin)
    a("s_load_dwordx2 s[24:25], s[0:1], 48\ns_waitcnt lgkmcnt(0)")
    a(f"s_and_b32 s25, s25, 0xffff\ns_mov_b32 s26, {2048*512*2}\ns_mov_b32 s27, 0x00020000")
    a(f"v_permlane32_swap_b32 v{P}, v{P+2}\nv_permlane32_swap_b32 v{P+1}, v{P+3}")
    Tt = P + 4
    a(f"v_and_b32 v{Tt}, 31, v1\nv_lshlrev_b32 v{Tt}, 10, v{Tt}\nv_lshrrev_b32 v{Tt+1}, 5, v1\nv_lshl_add_u32 v{Tt}, v{Tt+1}, 4, v{Tt}")
    a("s_lshl_b32 s28, s20, 15\ns_lshl_b32 s29, s21, 5\ns_add_u32 s28, s28, s29")
    a(f"buffer_store_dwordx4 v[{P}:{P+3}], v{Tt}, s[24:27], s28 offen")
    a.label(lend)
    a.vmreset()

def build():
    a = Asm()
    a.lines.append(f".globl {NAME}\n.p2align 8\n.type {NAME},@function")
    a.label(NAME)
    a(f"s_cmp_ge_u32 s2, 256\ns_cbranch_scc1 L_end")
    a("s_load_dwordx2 s[4:5], s[0:1], 64")
    a("s_load_dwordx2 s[16:17], s[0:1], 56")
    a("v_and_b32 v1, 63, v0\nv_lshrrev_b32 v2, 6, v0\ns_nop 0")
    a(f"v_readfirstlane_b32 s{S_WAVE}, v2")
    a("v_lshlrev_b32 v2, 4, v1")
    a(f"s_mov_b32 s{S_L}, 0\ns_mov_b32 s{S_MODE}, 0\ns_mov_b32 s{S_NONCE}, 0\ns_mov_b32 s{S_X}, 0\ns_mov_b32 s{S_I}, 0\ns_mov_b32 s{S_ROLE}, 0")
    if PROF: a("v_mov_b32 v254, 0\nv_mov_b32 v255, 0")
    a("s_waitcnt lgkmcnt(0)")
    a(f"s_and_b32 s5, s5, 0xffff\ns_mov_b32 s6, {WS_SIZE}\ns_mov_b32 s7, 0x00020000")
    def startup():
        a("s_and_b32 s17, s17, 0xffff\ns_mov_b32 s18, 256\ns_mov_b32 s19, 0x00020000")
        a("s_getreg_b32 s20, hwreg(HW_REG_XCC_ID, 0, 4)")
        a("s_and_b32 s21, s20, 7\ns_lshl_b32 s21, s21, 4\ns_add_u32 s21, s21, 16")
        a("v_mov_b32 v60, 1\nv_mov_b32 v6, s21")
        a("s_mov_b64 exec, 1")
        a("buffer_atomic_add v60, v6, s[16:19], 0 offen sc0 sc1")
        l = a.newlabel("nonce")
        a(f"s_cmp_lg_u32 s{S_WG}, 0\ns_cbranch_scc1 {l}")
        a("s_memrealtime s[22:23]\ns_waitcnt lgkmcnt(0)")
        a("s_lshl_b32 s22, s22, 8\ns_or_b32 s22, s22, 0x80000000")
        a("v_mov_b32 v4, s22\nv_mov_b32 v5, 0")
        a("buffer_store_dword v4, v5, s[16:19], 0 offen sc1")
        a.label(l)
        a("s_mov_b64 exec, -1")
        a("s_lshl_b32 s37, s20, 8")
    if_wave(a, "eq", SYNCW, startup)
    stamp(a, "start")
    gen_prep(a)
    a.label("L_layer")
    gen_ga(a, "qkv")
    gen_att(a)
    gen_wo(a)
    gen_ga(a, "w1")
    gen_w2(a)
    a(f"s_add_u32 s{S_L}, s{S_L}, 1\ns_cmp_lt_u32 s{S_L}, 2\ns_cbranch_scc1 L_layer")
    if PROF:
        a(f"s_mov_b32 s{S_L}, 1")
        stamp(a, "end")
        a(f"s_lshl_b32 s66, s{S_WG}, 12\ns_lshl_b32 s67, s{S_WAVE}, 9\ns_add_u32 s66, s66, s67\ns_add_u32 s66, s66, {PROF_WS}")
        a("v_lshlrev_b32 v250, 2, v1")
        a("buffer_store_dword v254, v250, s[4:7], s66 offen")
        a("buffer_store_dword v255, v250, s[4:7], s66 offen offset:256")
    a.label("L_end")
    a("s_endpgm")
    hdr = open("header.txt").read()
    s = hdr + "; @launch grid=(256,1,1) block=(512,1,1) lds=163840\n"
    s += '.amdgcn_target "amdgcn-amd-amdhsa--gfx950"\n.text\n' + a.text()
    s += f""".section .rodata,"a"
.p2align 6
.amdhsa_kernel {NAME}
  .amdhsa_next_free_vgpr 256
  .amdhsa_next_free_sgpr 96
  .amdhsa_accum_offset 256
  .amdhsa_group_segment_fixed_size 0
  .amdhsa_kernarg_size 72
  .amdhsa_user_sgpr_count 2
  .amdhsa_user_sgpr_kernarg_segment_ptr 1
  .amdhsa_system_sgpr_workgroup_id_x 1
  .amdhsa_float_denorm_mode_32 3
.end_amdhsa_kernel
"""
    return s

if __name__ == "__main__":
    out = sys.argv[1] if len(sys.argv) > 1 else "mega.s"
    if "--prof" in sys.argv: PROF = True
    if "--global" in sys.argv: FORCE_GLOBAL = True
    open(out, "w").write(build())
    if PROF: json.dump(STAMPS, open("stamps.json", "w"))
```

```python
import sys, math, struct, json

MB = 1 << 20
XF   = [0 * MB, 2 * MB, 4 * MB, 6 * MB]
WQF  = 8 * MB
WOF  = WQF + 0x180000
W1F  = 10 * MB
W2F  = 12 * MB
QKVF = 14 * MB
OF   = 26 * MB
HF   = 30 * MB
STB  = 46 * MB
ST_STRIDE = 0x80000
CSQ  = 48 * MB
CS1  = CSQ + 0x2000
FLG  = 49 * MB
PROF_WS = 50 * MB
WS_SIZE = 56 * MB
QSCALE = 0.25 * math.log2(math.e)
PROF = False
PRETOUCH = False
GA_D = 14
WO_THROTTLE = 4
FORCE_GLOBAL = False
NAME = "interleave_layers__mha_block__dense_activation_relu__prompt_kernel"
SPIN_MAX = 1 << 18

def f2u(f): return struct.unpack("<I", struct.pack("<f", f))[0]

class Asm:
    def __init__(self):
        self.lines = []; self.vm = []; self.uid = 0
    def __call__(self, s):
        for l in s.split("\n"):
            l = l.strip()
            if l: self.lines.append("    " + l)
    def label(self, name): self.lines.append(name + ":")
    def newlabel(self, base):
        self.uid += 1
        return f"L_{base}_{self.uid}"
    def c(self, s): self.lines.append("    ; " + s)
    def vmop(self, text, tag=None):
        self(text); self.vm.append(tag)
        assert len(self.vm) <= 63, "too many outstanding vm ops"
    def vmwait(self, tag, extra=""):
        tags = tag if isinstance(tag, (list, tuple, set)) else [tag]
        last = -1
        for i, t in enumerate(self.vm):
            if t in tags: last = i
        if last < 0:
            if extra: self("s_waitcnt " + extra)
            return
        n = len(self.vm) - 1 - last
        self(f"s_waitcnt vmcnt({n}) {extra}".strip())
        self.vm = self.vm[last + 1:]
    def vmwait_all(self, extra=""):
        self(f"s_waitcnt vmcnt(0) {extra}".strip()); self.vm = []
    def vmreset(self): self.vm = []
    def text(self): return "\n".join(self.lines) + "\n"

S_WG = 2; S_WAVE = 8; S_NONCE = 9; S_L = 10; S_X = 11; S_I = 12; S_MODE = 3
S_ROLE = 36
SYNCW = 7
LDS_BCAST = 163840 - 64

STAMPS = []
def stamp(a, name):
    if not PROF: return
    if name not in STAMPS: STAMPS.append(name)
    i = STAMPS.index(name)
    assert i < 64
    l0 = a.newlabel("st"); l1 = a.newlabel("st")
    a(("s_memtime" if name.startswith("c:") else "s_memrealtime") + " s[68:69]")
    a("s_waitcnt lgkmcnt(0)")
    a(f"s_cmp_lg_u32 s{S_L}, 0\ns_cbranch_scc1 {l0}")
    a(f"v_writelane_b32 v254, s68, {i}\ns_branch {l1}")
    a.label(l0)
    a(f"v_writelane_b32 v255, s68, {i}")
    a.label(l1)

def set_exec(a, nl):
    mask = (1 << nl) - 1
    a(f"s_mov_b32 exec_lo, {hex(mask & 0xffffffff)}")
    a(f"s_mov_b32 exec_hi, {hex(mask >> 32)}")

def phase_id(a, dst, k):
    a(f"s_mul_i32 s{dst}, s{S_L}, 5")
    a(f"s_add_u32 s{dst}, s{dst}, {1 + k}")

def if_wave(a, cond, val, body, base="w"):
    l = a.newlabel(base)
    inv = {"eq": "lg", "lt": "ge", "ge": "lt", "lg": "eq"}[cond]
    a(f"s_cmp_{inv}_u32 s{S_WAVE}, {val}")
    a(f"s_cbranch_scc1 {l}")
    body()
    a.label(l)

def signal(a, k, glob, keep=0):
    nm = ["qkv", "att", "wo", "w1", "w2"][k]
    stamp(a, nm + ":pre_drain")
    a(f"s_waitcnt vmcnt({keep})")
    stamp(a, nm + ":drained")
    a("s_barrier")
    def body(): flag_store(a, k, glob)
    if_wave(a, "eq", SYNCW, body, "sig")

def lds_add(a, addr, vtmp=4):
    a(f"v_mov_b32 v{vtmp}, {addr}\nv_mov_b32 v{vtmp+1}, 1")
    a("s_mov_b64 exec, 1")
    a(f"ds_add_u32 v{vtmp}, v{vtmp+1}")
    a("s_mov_b64 exec, -1")

def lds_wait(a, addr_txt, val, vtmp=4, stmp=28):
    lp = a.newlabel("lw"); ld = a.newlabel("lwd")
    a(f"v_mov_b32 v{vtmp}, {addr_txt}\ns_mov_b32 s{stmp+1}, 0")
    a.label(lp)
    a(f"ds_read_b32 v{vtmp+1}, v{vtmp}\ns_waitcnt lgkmcnt(0)")
    a(f"v_readfirstlane_b32 s{stmp}, v{vtmp+1}")
    a("s_nop 0")
    a(f"s_cmp_ge_u32 s{stmp}, {val}\ns_cbranch_scc1 {ld}")
    a(f"s_add_u32 s{stmp+1}, s{stmp+1}, 1\ns_cmp_lt_u32 s{stmp+1}, {SPIN_MAX}\ns_cbranch_scc1 {lp}")
    a.label(ld)

def flag_store(a, k, glob):
    phase_id(a, 20, k)
    a(f"s_add_u32 s21, s{S_NONCE}, s20")
    a(f"s_lshl_b32 s20, s20, 8\ns_add_u32 s20, s20, s{S_ROLE}\ns_lshl_b32 s20, s20, 7\ns_add_u32 s20, s20, {FLG}")
    a("v_mov_b32 v4, s21\nv_mov_b32 v5, 0")
    a("s_mov_b64 exec, 1")
    if glob:
        a("buffer_store_dword v4, v5, s[4:7], s20 offen sc1")
    else:
        l0 = a.newlabel("sg"); l1 = a.newlabel("sg")
        a(f"s_cmp_eq_u32 s{S_MODE}, 0\ns_cbranch_scc1 {l0}")
        a("buffer_store_dword v4, v5, s[4:7], s20 offen")
        a(f"s_branch {l1}")
        a.label(l0)
        a("buffer_store_dword v4, v5, s[4:7], s20 offen sc1")
        a.label(l1)
    a("s_mov_b64 exec, -1")

def poll(a, nlanes, phase_sreg):
    lp = a.newlabel("poll"); ld = a.newlabel("polld")
    a(f"s_add_u32 s21, s{S_NONCE}, s{phase_sreg}")
    a(f"s_lshl_b32 s20, s{phase_sreg}, 15\ns_add_u32 s20, s20, {FLG}")
    a("v_lshlrev_b32 v4, 7, v4")
    set_exec(a, nlanes)
    a("s_mov_b32 s22, 0")
    a.label(lp)
    a("buffer_load_dword v5, v4, s[4:7], s20 offen sc1")
    a("s_waitcnt vmcnt(0)")
    a("v_cmp_ne_u32 vcc, s21, v5")
    a("s_cmp_eq_u64 vcc, 0")
    a(f"s_cbranch_scc1 {ld}")
    a("s_add_u32 s22, s22, 1")
    a(f"s_cmp_lt_u32 s22, {SPIN_MAX}")
    a(f"s_cbranch_scc1 {lp}")
    a.label(ld)
    a("s_mov_b64 exec, -1")

def poll_rows16(a, k_or_phase, fixed_phase=None):
    a(f"s_and_b32 s19, s{S_I}, 1\ns_lshl_b32 s19, s19, 1\ns_lshl_b32 s23, s{S_X}, 5\ns_add_u32 s19, s19, s23")
    a("v_lshrrev_b32 v4, 1, v1\nv_lshlrev_b32 v4, 2, v4\nv_and_b32 v5, 1, v1\nv_add3_u32 v4, v4, v5, s19")
    if fixed_phase is not None: a(f"s_mov_b32 s19, {fixed_phase}")
    else: phase_id(a, 19, k_or_phase)
    poll(a, 16, 19)

def gen_prep(a):
    a.c("================ PREP ================")
    lend = a.newlabel("prep_end"); lx = a.newlabel("prep_x"); lw2 = a.newlabel("prep_w2"); lwo = a.newlabel("prep_wo")
    lw1 = a.newlabel("prep_w1"); lwc = a.newlabel("prep_wc"); lgo = a.newlabel("prep_go")
    a(f"s_cmp_ge_u32 s{S_WG}, 240\ns_cbranch_scc1 {lend}")
    a("s_load_dwordx2 s[16:17], s[0:1], 0\ns_load_dwordx2 s[28:29], s[0:1], 8\ns_load_dwordx2 s[30:31], s[0:1], 16")
    a("s_load_dwordx2 s[32:33], s[0:1], 32\ns_load_dwordx2 s[34:35], s[0:1], 40")
    a("s_waitcnt lgkmcnt(0)")
    stamp(a, "prep:ptrs")
    a(f"s_cmp_ge_u32 s{S_WG}, 176\ns_cbranch_scc1 {lx}")
    a(f"s_lshl_b32 s23, s{S_WAVE}, 2")
    a(f"s_cmp_ge_u32 s{S_WG}, 120\ns_cbranch_scc1 {lw2}")
    a(f"s_cmp_ge_u32 s{S_WG}, 104\ns_cbranch_scc1 {lwo}")
    a(f"s_cmp_ge_u32 s{S_WG}, 48\ns_cbranch_scc1 {lw1}")
    a("s_mov_b32 s16, s28\ns_mov_b32 s17, s29")
    a(f"s_mov_b32 s18, {512*1536*2}\ns_mov_b32 s21, 3072\ns_mov_b32 s22, s{S_WG}")
    a(f"s_lshl_b32 s24, s22, 15\ns_add_u32 s24, s24, {WQF}\ns_lshl_b32 s25, s22, 7\ns_add_u32 s25, s25, {CSQ}")
    a(f"s_branch {lwc}")
    a.label(lw1)
    a("s_mov_b32 s16, s32\ns_mov_b32 s17, s33")
    a(f"s_mov_b32 s18, {512*1792*2}\ns_mov_b32 s21, 3584\ns_sub_u32 s22, s{S_WG}, 48")
    a(f"s_lshl_b32 s24, s22, 15\ns_add_u32 s24, s24, {W1F}\ns_lshl_b32 s25, s22, 7\ns_add_u32 s25, s25, {CS1}")
    a(f"s_branch {lwc}")
    a.label(lwo)
    a("s_mov_b32 s16, s30\ns_mov_b32 s17, s31")
    a(f"s_mov_b32 s18, {512*512*2}\ns_mov_b32 s21, 1024\ns_sub_u32 s22, s{S_WG}, 104")
    a(f"s_lshl_b32 s24, s22, 15\ns_add_u32 s24, s24, {WOF}\ns_mov_b32 s25, 0")
    a.label(lwc)
    a("s_lshl_b32 s26, s23, 10\ns_add_u32 s24, s24, s26")
    a(f"s_branch {lgo}")
    a.label(lw2)
    a("s_mov_b32 s16, s34\ns_mov_b32 s17, s35")
    a(f"s_mov_b32 s18, {1792*512*2}\ns_mov_b32 s21, 1024\ns_sub_u32 s26, s{S_WG}, 120")
    a("s_lshl_b32 s26, s26, 5\ns_add_u32 s26, s26, s23")
    a("s_mul_i32 s22, s26, 9363\ns_lshr_b32 s22, s22, 20\ns_mul_i32 s27, s22, 112\ns_sub_u32 s23, s26, s27")
    a(f"s_lshl_b32 s24, s26, 10\ns_add_u32 s24, s24, {W2F}\ns_mov_b32 s25, 0")
    a.label(lgo)
    a("s_and_b32 s17, s17, 0xffff\ns_mov_b32 s19, 0x00020000")
    a("v_lshrrev_b32 v4, 2, v1\ns_lshl_b32 s26, s23, 4\nv_add_u32 v4, s26, v4\nv_mul_lo_u32 v4, v4, s21")
    a("v_and_b32 v5, 3, v1\nv_lshlrev_b32 v5, 4, v5\ns_lshl_b32 s26, s22, 6\nv_add3_u32 v4, v4, v5, s26")
    a(f"s_lshl_b32 s27, s21, 4\ns_lshl_b32 s28, s{S_WAVE}, 12\ns_mov_b32 s29, 0")
    for j in range(4):
        a(f"s_add_u32 m0, s28, {j*1024}\ns_nop 0")
        a(f"buffer_load_dwordx4 v4, s[16:19], s29 offen lds")
        a("s_add_u32 s29, s29, s27")
    a("v_lshrrev_b32 v6, 5, v1\nv_lshlrev_b32 v6, 2, v6\nv_bfe_u32 v7, v1, 2, 2\nv_add_u32 v6, v6, v7\nv_lshlrev_b32 v6, 6, v6")
    a("v_bfe_u32 v7, v1, 4, 1\nv_lshlrev_b32 v7, 5, v7\nv_add_u32 v6, v6, v7\nv_and_b32 v7, 3, v1\nv_lshlrev_b32 v7, 3, v7\nv_add3_u32 v6, v6, v7, s28")
    stamp(a, "prep:issued")
    a("s_waitcnt vmcnt(0)")
    stamp(a, "prep:landed")
    for j in range(4):
        a(f"ds_read_b64_tr_b16 v[{8+4*j}:{9+4*j}], v6 offset:{j*1024}")
        a(f"ds_read_b64_tr_b16 v[{10+4*j}:{11+4*j}], v6 offset:{j*1024+512}")
    a("s_waitcnt lgkmcnt(0)")
    for j in range(4):
        a(f"buffer_store_dwordx4 v[{8+4*j}:{11+4*j}], v2, s[4:7], s24 offen offset:{j*1024} sc1")
    a(f"s_cmp_eq_u32 s25, 0\ns_cbranch_scc1 {lend}")
    a("v_mov_b32 v30, 0x3f803f80\nv_mov_b32 v31, 0\ns_nop 0")
    for j in range(16): a(f"v_dot2_f32_bf16 v31, v{8+j}, v30, v31")
    a("v_mov_b32 v32, v31\ns_nop 1\nv_permlane32_swap_b32 v31, v32\ns_nop 1\nv_add_f32 v31, v31, v32")
    a(f"s_lshl_b32 s26, s{S_WAVE}, 8\ns_add_u32 s26, s26, 32768\nv_lshlrev_b32 v33, 2, v1\nv_add_u32 v33, s26, v33")
    a("ds_write_b32 v33, v31\ns_waitcnt lgkmcnt(0)\ns_barrier")
    a(f"s_cmp_lg_u32 s{S_WAVE}, 0\ns_cbranch_scc1 {lend}")
    a("v_lshlrev_b32 v33, 2, v1")
    for w in range(8): a(f"ds_read_b32 v{34+w}, v33 offset:{32768+w*256}")
    a("s_waitcnt lgkmcnt(0)")
    for w in range(1, 8): a(f"v_add_f32 v34, v34, v{34+w}")
    set_exec(a, 32)
    a("buffer_store_dword v34, v33, s[4:7], s25 offen sc1")
    a("s_mov_b64 exec, -1")
    a(f"s_branch {lend}")
    a.label(lx)
    a(f"s_and_b32 s17, s17, 0xffff\ns_mov_b32 s18, {2048*512*2}\ns_mov_b32 s19, 0x00020000")
    a(f"s_sub_u32 s22, s{S_WG}, 176")
    a("v_and_b32 v4, 31, v1\ns_lshl_b32 s26, s22, 5\nv_add_u32 v4, s26, v4\nv_lshlrev_b32 v5, 3, v4\nv_lshlrev_b32 v4, 10, v4")
    a(f"v_lshrrev_b32 v6, 5, v1\nv_lshlrev_b32 v6, 3, v6\ns_lshl_b32 s26, s{S_WAVE}, 7\nv_add3_u32 v4, v4, v6, s26")
    for j in range(4):
        a(f"buffer_load_dwordx2 v[{8+4*j}:{9+4*j}], v4, s[16:19], 0 offen offset:{j*32}")
        a(f"buffer_load_dwordx2 v[{10+4*j}:{11+4*j}], v4, s[16:19], 0 offen offset:{j*32+16}")
    a(f"s_lshl_b32 s24, s22, 15\ns_lshl_b32 s26, s{S_WAVE}, 12\ns_add_u32 s24, s24, s26\ns_add_u32 s24, s24, {XF[0]}")
    a("v_mov_b32 v30, 0x3f803f80")
    a("s_waitcnt vmcnt(0)")
    for j in range(4):
        a(f"buffer_store_dwordx4 v[{8+4*j}:{11+4*j}], v2, s[4:7], s24 offen offset:{j*1024} sc1")
    for j in range(4): a(f"v_mov_b32 v{32+2*j}, 0\nv_mov_b32 v{33+2*j}, 0")
    a("s_nop 0")
    for j in range(4):
        for k in range(4):
            r = 8 + 4*j + k
            a(f"v_dot2_f32_bf16 v{32+2*j}, v{r}, v30, v{32+2*j}")
            a(f"v_dot2_f32_bf16 v{33+2*j}, v{r}, v{r}, v{33+2*j}")
    for k in range(8): a(f"v_mov_b32 v{40+k}, v{32+k}")
    a("s_nop 1")
    for k in range(8): a(f"v_permlane32_swap_b32 v{32+k}, v{40+k}")
    a("s_nop 1")
    for k in range(8): a(f"v_add_f32 v{32+k}, v{32+k}, v{40+k}")
    a(f"s_lshl_b32 s26, s{S_WAVE}, 16\ns_add_u32 s26, s26, {STB}")
    set_exec(a, 32)
    for j in range(4):
        a(f"buffer_store_dwordx2 v[{32+2*j}:{33+2*j}], v5, s[4:7], s26 offen sc1")
        if j < 3: a("s_add_u32 s26, s26, 16384")
    a("s_mov_b64 exec, -1")
    a.label(lend)
    stamp(a, "prep:pre_drain")
    a("s_waitcnt vmcnt(0)")
    stamp(a, "prep:drained")
    a("s_barrier")
    def body():
        a("s_load_dwordx2 s[16:17], s[0:1], 56")
        a("s_waitcnt lgkmcnt(0)")
        a("s_and_b32 s17, s17, 0xffff\ns_mov_b32 s18, 256\ns_mov_b32 s19, 0x00020000")
        lp = a.newlabel("np"); ld = a.newlabel("npd")
        a("v_mov_b32 v5, 0\ns_mov_b32 s22, 0")
        a("s_mov_b64 exec, 1")
        a.label(lp)
        a("buffer_load_dword v4, v5, s[16:19], 0 offen sc1")
        a("s_waitcnt vmcnt(0)")
        a("v_readfirstlane_b32 s21, v4")
        a("s_nop 3")
        a(f"s_cmp_lg_u32 s21, 0\ns_cbranch_scc1 {ld}")
        a(f"s_add_u32 s22, s22, 1\ns_cmp_lt_u32 s22, {SPIN_MAX}\ns_cbranch_scc1 {lp}")
        a.label(ld)
        a(f"s_mov_b32 s{S_NONCE}, s21")
        stamp(a, "prep:nonce")
        a(f"v_or_b32 v60, s37, v60")
        a(f"v_mov_b32 v4, s21\nv_mov_b32 v5, v60\nv_mov_b32 v6, 0")
        a(f"s_lshl_b32 s20, s{S_WG}, 7\ns_add_u32 s20, s20, {FLG}")
        a("buffer_store_dwordx2 v[4:5], v6, s[4:7], s20 offen sc1")
        a("s_mov_b64 exec, -1")
        a("v_lshlrev_b32 v4, 7, v1")
        a("s_mov_b32 s22, 0")
        lp = a.newlabel("pp"); ld = a.newlabel("ppd")
        a.label(lp)
        for p in range(4):
            a(f"s_mov_b32 s23, {FLG + p*8192}")
            a(f"buffer_load_dwordx2 v[{8+2*p}:{9+2*p}], v4, s[4:7], s23 offen sc1")
        a("s_waitcnt vmcnt(0)")
        a(f"v_cmp_ne_u32 vcc, s{S_NONCE}, v8")
        for p in range(1, 4):
            a(f"v_cmp_ne_u32 s[24:25], s{S_NONCE}, v{8+2*p}\ns_or_b64 vcc, vcc, s[24:25]")
        a(f"s_cmp_eq_u64 vcc, 0\ns_cbranch_scc1 {ld}")
        a(f"s_add_u32 s22, s22, 1\ns_cmp_lt_u32 s22, {SPIN_MAX}\ns_cbranch_scc1 {lp}")
        a.label(ld)
        stamp(a, "prep:allflags")
        a("v_or_b32 v16, v9, v11\nv_or3_b32 v16, v16, v13, v15")
        a("v_and_b32 v16, 0xfffff8e0, v16")
        a("v_cmp_ne_u32 vcc, 0, v16")
        a("s_cmp_eq_u64 vcc, 0")
        a(f"s_cselect_b32 s{S_MODE}, 1, 0")
        if FORCE_GLOBAL: a(f"s_mov_b32 s{S_MODE}, 0")
        a("v_readfirstlane_b32 s23, v60")
        a(f"s_and_b32 s24, s{S_WG}, 7\ns_lshr_b32 s25, s{S_WG}, 3")
        a("s_lshr_b32 s26, s23, 8\ns_and_b32 s27, s23, 0xff")
        a(f"s_cmp_eq_u32 s{S_MODE}, 1\ns_cselect_b32 s24, s26, s24\ns_cselect_b32 s25, s27, s25")
        a(f"v_mov_b32 v4, s{S_MODE}\nv_mov_b32 v5, s24\nv_mov_b32 v6, s25\nv_mov_b32 v7, s{S_NONCE}\nv_mov_b32 v8, {LDS_BCAST}")
        a("ds_write_b128 v8, v[4:7]\ns_waitcnt lgkmcnt(0)")
    if_wave(a, "eq", SYNCW, body, "psig")
    a("s_barrier")
    a(f"v_mov_b32 v8, {LDS_BCAST}\nds_read_b128 v[4:7], v8\ns_waitcnt lgkmcnt(0)")
    a(f"v_readfirstlane_b32 s{S_MODE}, v4\nv_readfirstlane_b32 s{S_X}, v5\nv_readfirstlane_b32 s{S_I}, v6\nv_readfirstlane_b32 s{S_NONCE}, v7")
    a("s_nop 3")
    a(f"s_lshl_b32 s{S_ROLE}, s{S_X}, 5\ns_add_u32 s{S_ROLE}, s{S_ROLE}, s{S_I}")
    def touch():
        a(f"v_and_b32 v4, 3, v1\nv_lshrrev_b32 v5, 2, v1\nv_mul_u32_u24 v5, 5, v5\nv_add3_u32 v4, v4, v5, 2")
        a(f"v_lshlrev_b32 v4, 15, v4\ns_lshl_b32 s20, s{S_ROLE}, 7\ns_add_u32 s20, s20, {FLG}")
        set_exec(a, 8)
        a("buffer_load_dword v61, v4, s[4:7], s20 offen")
        a("s_mov_b64 exec, -1")
    if_wave(a, "eq", SYNCW, touch)
    stamp(a, "prep:done")

def stats_issue(a, ng, vtmp, vdst, s_rt, s_st, stmp):
    h = ng // 2
    a(f"v_lshrrev_b32 v{vtmp}, 5, v1\nv_mul_u32_u24 v{vtmp}, {h*16384}, v{vtmp}\nv_and_b32 v{vdst}, 31, v1\nv_lshl_add_u32 v{vtmp}, v{vdst}, 3, v{vtmp}")
    a(f"s_lshl_b32 s{stmp}, s{s_rt}, 8\ns_add_u32 s{stmp}, s{stmp}, s{s_st}")
    for i in range(h):
        a.vmop(f"buffer_load_dwordx2 v[{vdst+2*i}:{vdst+2*i+1}], v{vtmp}, s[4:7], s{stmp} offen", "stats")
        if i < h - 1: a(f"s_add_u32 s{stmp}, s{stmp}, 16384")

def stats_finish(a, ng, vdst, vNM, vRS):
    h = ng // 2
    a.vmwait("stats")
    for i in range(1, h):
        a(f"v_pk_add_f32 v[{vdst}:{vdst+1}], v[{vdst}:{vdst+1}], v[{vdst+2*i}:{vdst+2*i+1}]")
    a(f"v_mov_b32 v{vdst+2}, v{vdst}\nv_mov_b32 v{vdst+3}, v{vdst+1}\ns_nop 1")
    a(f"v_permlane32_swap_b32 v{vdst}, v{vdst+2}\nv_permlane32_swap_b32 v{vdst+1}, v{vdst+3}\ns_nop 1")
    a(f"v_add_f32 v{vdst}, v{vdst}, v{vdst+2}\nv_add_f32 v{vdst+1}, v{vdst+1}, v{vdst+3}")
    a(f"v_mul_f32 v{vNM}, {f2u(-1.0/512):#x}, v{vdst}")
    a(f"v_mul_f32 v{vdst+1}, {f2u(1.0/512):#x}, v{vdst+1}")
    a(f"v_fma_f32 v{vdst+1}, -v{vNM}, v{vNM}, v{vdst+1}")
    a(f"v_max_f32 v{vdst+1}, 0, v{vdst+1}")
    a(f"v_add_f32 v{vdst+1}, {f2u(1e-5):#x}, v{vdst+1}")
    a(f"v_rsq_f32 v{vRS}, v{vdst+1}\ns_nop 0")

CSL = 139264
def ga_roles(a, smb, snb):
    a(f"s_and_b32 s{smb}, s{S_I}, 1\ns_lshl_b32 s{snb}, s{S_X}, 1\ns_add_u32 s{smb}, s{smb}, s{snb}\ns_lshr_b32 s{snb}, s{S_I}, 1")

def ga_wdma(a, qkv, snb, s0, s1, s2, ksteps_of_wave):
    NT = 3 if qkv else 4
    wf = WQF if qkv else W1F
    a(f"s_mul_i32 s{s0}, s{snb}, {NT*32768}\ns_add_u32 s{s0}, s{s0}, {wf}\ns_lshl_b32 s{s1}, s{S_WAVE}, 12\ns_add_u32 s{s0}, s{s0}, s{s1}")
    for t in range(NT):
        a(f"s_add_u32 m0, s{s1}, {t*32768}\ns_add_u32 s{s2}, s{s0}, {t*32768}")
        for j in range(4):
            a.vmop(f"buffer_load_dwordx4 v2, s[4:7], s{s2} offen offset:{j*1024} lds", "wpf")

def gen_ga(a, kind):
    qkv = kind == "qkv"
    NT = 3 if qkv else 4
    cs = CSQ if qkv else CS1
    NG = 32 if qkv else 16
    a.c(f"================ GA {kind} ================")
    lskip = a.newlabel("ga_skip")
    if not qkv:
        a(f"s_cmp_ge_u32 s{S_I}, 28\ns_cbranch_scc1 {lskip}")
    ga_roles(a, 13, 14)
    if qkv:
        l = a.newlabel("q0w")
        a(f"s_cmp_lg_u32 s{S_L}, 0\ns_cbranch_scc1 {l}")
        ga_wdma(a, True, 14, 16, 17, 18, None)
        a.label(l)
        a.vmreset()
    def csdma():
        a(f"s_mul_i32 s18, s14, {NT*128}\ns_add_u32 s18, s18, {cs}\nv_lshlrev_b32 v4, 2, v1")
        a(f"s_mov_b32 m0, {CSL}\ns_nop 0")
        a("buffer_load_dword v4, s[4:7], s18 offen lds")
        a(f"s_mov_b32 m0, {CSL + 256}\ns_add_u32 s18, s18, 256")
        a("buffer_load_dword v4, s[4:7], s18 offen lds")
    if_wave(a, "eq", 4, csdma)
    def do_poll():
        if qkv:
            l1 = a.newlabel("q1")
            a(f"s_cmp_eq_u32 s{S_L}, 0\ns_cbranch_scc1 {l1}")
            poll_rows16(a, None, fixed_phase=5)
            a.label(l1)
        else:
            poll_rows16(a, 2)
    if_wave(a, "eq", SYNCW, do_poll)
    stamp(a, kind + ":polled")
    a("s_waitcnt vmcnt(0)")
    a("s_barrier")
    stamp(a, kind + ":bar1")
    a.vmreset()
    lcomp = a.newlabel("ga_comp"); lend = a.newlabel("ga_end")
    a(f"s_cmp_lt_u32 s{S_WAVE}, 4\ns_cbranch_scc1 {lcomp}")
    a(f"s_lshl_b32 s15, s13, 2\ns_add_u32 s15, s15, s{S_WAVE}\ns_sub_u32 s15, s15, 4")
    if qkv: a(f"s_lshl_b32 s19, s{S_L}, 20\ns_add_u32 s19, s19, {STB}")
    else: a(f"s_lshl_b32 s19, s{S_L}, 20\ns_add_u32 s19, s19, {STB + ST_STRIDE}")
    stats_issue(a, NG, 8, 16, 15, 19, 18)
    stats_finish(a, NG, 16, 10, 11)
    a(f"s_sub_u32 s20, s{S_WAVE}, 4\ns_lshl_b32 s20, s20, 8\ns_add_u32 s20, s20, {CSL + 512}")
    a("v_and_b32 v12, 31, v1\nv_lshlrev_b32 v12, 3, v12\nv_add_u32 v12, s20, v12")
    a("ds_write_b64 v12, v[10:11]\ns_waitcnt lgkmcnt(0)")
    a("s_barrier")
    a(f"s_branch {lend}")
    a.vmreset()
    a.label(lcomp)
    RING = 16
    VX = 16; VACC = VX + 4 * RING; VW = VACC + 64; VSTAT = VW + 48
    VNM = 4; VRS = 6; VT = 8
    assert VSTAT + 32 <= 250
    a("v_add_u32 v3, 0x10000, v2")
    a(f"s_lshl_b32 s15, s13, 2\ns_add_u32 s15, s15, s{S_WAVE}")
    if qkv: a(f"s_lshl_b32 s16, s{S_L}, 22")
    else: a(f"s_lshl_b32 s16, s{S_L}, 22\ns_add_u32 s16, s16, {XF[1]}")
    a("s_lshl_b32 s17, s15, 15\ns_add_u32 s16, s16, s17")
    def xreg(s): return VX + 4 * (s % RING)
    def xload(s):
        j = s % 4
        if j == 0 and s > 0: a("s_add_u32 s16, s16, 4096")
        a.vmop(f"buffer_load_dwordx4 v[{xreg(s)}:{xreg(s)+3}], v2, s[4:7], s16 offen offset:{j*1024}", f"x{s}")
    nxt = [0]
    def xto(n):
        while nxt[0] <= min(n, 31):
            xload(nxt[0]); nxt[0] += 1
    def rd1(s, t):
        off = (t * 32 + s) * 1024
        base = 2 if off < 65536 else 3
        b = VW + ((s % 3) * NT + t) * 4
        a(f"ds_read_b128 v[{b}:{b+3}], v{base} offset:{off & 0xffff}")
    xto(3)
    for s in range(2):
        for t in range(NT): rd1(s, t)
    xto(8)
    DX = GA_D
    for p in range(32):
        a.vmwait(f"x{p}", f"lgkmcnt({NT if p < 31 else 0})")
        if p == 0:
            stamp(a, kind + ":x0"); stamp(a, "c:" + kind + ":x0")
        if p == 16: stamp(a, "c:" + kind + ":x16")
        for t in range(NT):
            wb = VW + ((p % 3) * NT + t) * 4
            cin = "0" if p == 0 else f"v[{VACC+16*t}:{VACC+16*t+15}]"
            a(f"v_mfma_f32_32x32x16_bf16 v[{VACC+16*t}:{VACC+16*t+15}], v[{wb}:{wb+3}], v[{xreg(p)}:{xreg(p)+3}], {cin}")
            if p + 2 < 32: rd1(p + 2, t)
            if t == 1: xto(min(2 * p + 10, p + DX))
        if p == 24: a("s_barrier")
    stamp(a, kind + ":main_end"); stamp(a, "c:" + kind + ":main_end")
    a(f"s_lshl_b32 s20, s{S_WAVE}, 8\ns_add_u32 s20, s20, {CSL + 512}")
    a(f"v_and_b32 v{VT}, 31, v1\nv_lshlrev_b32 v{VT}, 3, v{VT}\nv_add_u32 v{VT}, s20, v{VT}")
    a(f"ds_read_b64 v[{VSTAT}:{VSTAT+1}], v{VT}")
    a(f"v_lshrrev_b32 v{VT}, 5, v1\nv_lshlrev_b32 v{VT}, 4, v{VT}\nv_add_u32 v{VT}, {CSL}, v{VT}")
    for t in range(NT):
        for q in range(4):
            a(f"ds_read_b128 v[{VX+(t*4+q)*4}:{VX+(t*4+q)*4+3}], v{VT} offset:{t*128+q*32}")
            if (t * 4 + q) == 10: a("s_waitcnt lgkmcnt(4)")
    if qkv:
        a(f"s_mul_i32 s21, s14, {2*NT*65536}\ns_lshl_b32 s22, s15, 10\ns_add_u32 s21, s21, s22")
        a(f"s_mul_i32 s22, s{S_L}, {6*MB}\ns_add_u32 s21, s21, s22\ns_add_u32 s21, s21, {QKVF}")
        ostep = 65536
    else:
        a(f"s_mul_i32 s21, s15, {112*1024}\ns_mul_i32 s22, s14, {2*NT*1024}\ns_add_u32 s21, s21, s22")
        a(f"s_lshl_b32 s22, s{S_L}, 23\ns_add_u32 s21, s21, s22\ns_add_u32 s21, s21, {HF}")
        ostep = 1024
    a("s_waitcnt lgkmcnt(0)")
    a(f"v_mov_b32 v{VNM}, v{VSTAT}\nv_mov_b32 v{VRS}, v{VSTAT+1}")
    a("s_nop 7")
    for t in range(NT):
        if qkv:
            a(f"s_mul_i32 s23, s14, {NT}\ns_add_u32 s23, s23, {t}\ns_cmp_lt_u32 s23, 16")
            a(f"s_cselect_b32 s24, {f2u(QSCALE):#x}, 1.0")
            a(f"v_mul_f32 v{VT}, s24, v{VRS}")
            vrs = VT
        else: vrs = VRS
        A = VACC + 16 * t
        for r in range(0, 16, 2):
            a(f"v_pk_fma_f32 v[{A+r}:{A+r+1}], v[{VX+t*16+r}:{VX+t*16+r+1}], v[{VNM}:{VNM+1}], v[{A+r}:{A+r+1}] op_sel_hi:[1,0,1]")
        for r in range(0, 16, 2):
            a(f"v_pk_mul_f32 v[{A+r}:{A+r+1}], v[{A+r}:{A+r+1}], v[{vrs}:{vrs+1}] op_sel_hi:[1,0]")
        P = VW + t * 8
        for i in range(8): a(f"v_cvt_pk_bf16_f32 v{P+i}, v{A+2*i}, v{A+2*i+1}")
        if not qkv:
            for i in range(8): a(f"v_pk_max_i16 v{P+i}, v{P+i}, 0")
        for u in range(2):
            a(f"s_add_u32 s23, s21, {(2*t+u)*ostep}")
            a.vmop(f"buffer_store_dwordx4 v[{P+4*u}:{P+4*u+3}], v2, s[4:7], s23 offen sc1", "st")
    a.label(lend)
    signal(a, 0 if qkv else 3, qkv)
    a.label(lskip)
    a.vmreset()

W2_VWR_HI = 136
WO_VWR = 124
WO_SY = 137216
WO_EX = 147456
def gb_roles(a, smb, snb):
    a(f"s_and_b32 s{smb}, s{S_I}, 3\ns_lshl_b32 s{snb}, s{S_X}, 2\ns_add_u32 s{smb}, s{smb}, s{snb}\ns_lshr_b32 s{snb}, s{S_I}, 2")

def wo_wpre(a):
    KS = 32
    a(f"s_lshr_b32 s40, s{S_I}, 2")
    a(f"s_and_b32 s41, s{S_WAVE}, 1\ns_lshl_b32 s41, s41, 14\ns_mul_i32 s40, s40, {2*KS*1024}\ns_add_u32 s40, s40, s41\ns_add_u32 s40, s40, {WOF}\ns_add_u32 s41, s40, {KS*1024}")
    for s in range(16):
        if s % 4 == 0 and s > 0: a("s_add_u32 s40, s40, 4096\ns_add_u32 s41, s41, 4096")
        for bi, sb in enumerate((40, 41)):
            a.vmop(f"buffer_load_dwordx4 v[{WO_VWR+8*s+4*bi}:{WO_VWR+8*s+4*bi+3}], v2, s[4:7], s{sb} offen offset:{(s%4)*1024}", "wo_w")

def gen_att(a):
    a.c("================ ATT ================")
    KL = 0; VL = 65536; ONES = 131072; EXL = 139264; UNR = 4
    BADW = WO_SY + 32
    a(f"s_mov_b32 s13, s{S_I}\ns_mov_b32 s14, s{S_X}")
    a("v_mov_b32 v4, 0x3f803f80\nv_mov_b32 v5, 0x3f803f80\nv_mov_b32 v6, 0x3f803f80\nv_mov_b32 v7, 0x3f803f80")
    a(f"v_lshlrev_b32 v12, 4, v0\nv_add_u32 v12, {ONES}, v12")
    a("v_cmp_gt_u32 vcc, 288, v0\ns_and_saveexec_b64 s[16:17], vcc")
    a("ds_write_b128 v12, v[4:7]")
    a("s_mov_b64 exec, -1")
    def zsy():
        a(f"v_mov_b32 v4, {WO_SY}\nv_mov_b32 v6, 0\nv_mov_b32 v7, 0\nv_mov_b32 v8, 0\nv_mov_b32 v9, 0")
        a("ds_write_b128 v4, v[6:9]\nds_write_b128 v4, v[6:9] offset:16\nds_write_b128 v4, v[6:9] offset:32")
    if_wave(a, "eq", SYNCW, zsy)
    def do_poll():
        a("s_lshr_b32 s16, s13, 1")
        a("s_add_u32 s17, s16, 16\ns_mul_i32 s17, s17, 171\ns_lshr_b32 s17, s17, 9")
        a("s_add_u32 s18, s16, 32\ns_mul_i32 s18, s18, 171\ns_lshr_b32 s18, s18, 9")
        a("s_mul_i32 s19, s16, 171\ns_lshr_b32 s19, s19, 9")
        for v in range(48): assert (v * 171) >> 9 == v // 3
        a("v_bfe_u32 v8, v1, 1, 3\nv_mov_b32 v9, s17\nv_mov_b32 v10, s18")
        a("v_cmp_le_u32 vcc, 16, v1\ns_nop 1\nv_cndmask_b32 v9, v9, v10, vcc")
        a(f"v_mov_b32 v10, s19\nv_mov_b32 v11, s{S_X}")
        a("v_cmp_le_u32 vcc, 32, v1\ns_nop 1\nv_cndmask_b32 v9, v9, v10, vcc\nv_cndmask_b32 v8, v8, v11, vcc")
        a("v_and_b32 v4, 1, v1\nv_lshl_add_u32 v4, v9, 1, v4\nv_lshl_add_u32 v4, v8, 5, v4")
        phase_id(a, 19, 0)
        poll(a, 34, 19)
    if_wave(a, "eq", SYNCW, do_poll)
    a("s_waitcnt lgkmcnt(0)")
    a("s_barrier")
    stamp(a, "att:bar1")
    a.vmreset()
    a(f"s_and_b32 s15, s{S_WAVE}, 3\ns_lshr_b32 s16, s{S_WAVE}, 2")
    a("s_lshl_b32 s17, s14, 3\ns_lshl_b32 s18, s15, 1\ns_add_u32 s17, s17, s18")
    a(f"s_mul_i32 s18, s{S_L}, {6*MB}\ns_add_u32 s18, s18, {QKVF}\ns_lshl_b32 s19, s13, 16\ns_add_u32 s18, s18, s19")
    VQ = [8, 12]
    a("v_lshrrev_b32 v3, 1, v1\nv_and_b32 v4, 1, v1\nv_lshl_add_u32 v3, v4, 5, v3\nv_lshlrev_b32 v3, 4, v3")
    a("s_lshl_b32 s20, s16, 5\ns_add_u32 s20, s20, s15\ns_lshl_b32 s20, s20, 10")
    a(f"s_add_u32 s21, s18, s20\ns_add_u32 s22, s21, {64*65536}\ns_add_u32 s21, s21, {32*65536}")
    def chunk(c):
        a(f"s_add_u32 m0, s20, {KL + c*4096}\ns_add_u32 s19, s21, {c*4096}")
        a.vmop(f"buffer_load_dwordx4 v2, s[4:7], s19 offen lds", f"c{c}")
        a(f"s_add_u32 m0, s20, {VL + c*4096}\ns_add_u32 s19, s22, {c*4096}")
        a.vmop(f"buffer_load_dwordx4 v3, s[4:7], s19 offen lds", f"c{c}")
    chunk(0)
    a("s_lshl_b32 s19, s17, 10\ns_add_u32 s19, s19, s18")
    a.vmop(f"buffer_load_dwordx4 v[8:11], v2, s[4:7], s19 offen", "q")
    a.vmop(f"buffer_load_dwordx4 v[12:15], v2, s[4:7], s19 offen offset:1024", "q")
    a("s_lshl_b32 s23, s16, 15\nv_add_u32 v16, s23, v2")
    a("v_lshrrev_b32 v17, 5, v1\nv_lshlrev_b32 v17, 2, v17\nv_bfe_u32 v4, v1, 2, 2\nv_add_u32 v17, v17, v4\nv_lshlrev_b32 v17, 5, v17")
    a("v_and_b32 v4, 1, v1\nv_lshl_add_u32 v17, v4, 4, v17\nv_bfe_u32 v4, v1, 1, 1\nv_lshl_add_u32 v17, v4, 3, v17")
    a(f"v_mov_b32 v19, v17")
    a(f"s_add_u32 s23, s23, {VL}\nv_add_u32 v17, s23, v17")
    a(f"v_lshrrev_b32 v4, 5, v1\nv_xor_b32 v4, 1, v4\nv_lshlrev_b32 v4, 7, v4\nv_add_u32 v4, {ONES}, v4")
    a(f"v_bfe_u32 v5, v1, 4, 1\nv_cmp_eq_u32 vcc, 1, v5\nv_mov_b32 v18, {UNR*1024}\nv_mov_b32 v6, 0")
    a(f"v_add_u32 v19, {VL}, v19")
    a("v_cndmask_b32 v17, v17, v4, vcc\nv_cndmask_b32 v18, v18, v6, vcc\nv_cndmask_b32 v19, v19, v4, vcc")
    VK = [20, 24]; VS = [28, 44]; VP = [60, 68]; VO = [76, 92]; VV = [108, 116]
    def rdK(Tl, buf): a(f"ds_read_b128 v[{VK[buf]}:{VK[buf]+3}], v16 offset:{KL + Tl*1024}")
    def rdV(Tl, buf, reg=17):
        for t in range(2):
            for u in range(2):
                d = VV[buf] + 4*t + 2*u
                a(f"ds_read_b64_tr_b16 v[{d}:{d+1}], v{reg} offset:{Tl*1024 + t*512 + u*256}")
    def qk(q, kb, c="0"): a(f"v_mfma_f32_32x32x16_bf16 v[{VS[q]}:{VS[q]+15}], v[{VK[kb]}:{VK[kb]+3}], v[{VQ[q]}:{VQ[q]+3}], {c}")
    def pv(q, vb, t): a(f"v_mfma_f32_32x32x16_bf16 v[{VO[q]}:{VO[q]+15}], v[{VV[vb]+4*t}:{VV[vb]+4*t+3}], v[{VP[q]+4*t}:{VP[q]+4*t+3}], v[{VO[q]}:{VO[q]+15}]")
    def ex(q, lo, hi):
        for i in range(lo, hi): a(f"v_exp_f32 v{VS[q]+i}, v{VS[q]+i}")
    def cv(q, lo, hi):
        for i in range(lo, hi): a(f"v_cvt_pk_bf16_f32 v{VP[q]+i}, v{VS[q]+2*i}, v{VS[q]+2*i+1}")
    for q in range(2):
        for r in range(16): a(f"v_mov_b32 v{VO[q]+r}, 0")
    for r in range(8): a(f"v_mov_b32 v{VP[1]+r}, 0\nv_mov_b32 v{VV[1]+r}, 0")
    a.vmwait(["q", "c0"])
    stamp(a, "att:c01")
    a("s_barrier")
    chunk(1); chunk(2); chunk(3)
    rdK(0, 0)
    a("s_waitcnt lgkmcnt(0)")
    qk(0, 0)
    a("s_nop 7\ns_nop 7")
    def window(q, m1, m2, m3, pre=None):
        if m1: m1()
        if pre: pre()
        ex(q, 0, 8)
        if m2: m2()
        cv(q, 0, 4)
        ex(q, 8, 12)
        if m3: m3()
        ex(q, 12, 16)
        cv(q, 4, 8)
    def tile(Tl, last):
        cur = Tl & 1; nx = cur ^ 1
        fin = last and Tl == UNR - 1
        def preA():
            if not fin: rdK(Tl + 1, nx)
            rdV(Tl, cur)
        window(0, lambda: qk(1, cur), lambda: pv(1, nx, 0), lambda: pv(1, nx, 1), preA)
        def m1():
            a("s_waitcnt lgkmcnt(0)")
            if not fin: qk(0, nx)
        window(1, m1, lambda: pv(0, cur, 0), lambda: pv(0, cur, 1))
    def group(last=False, mid=None):
        for Tl in range(UNR):
            if Tl == UNR - 1 and mid: mid()
            tile(Tl, last)
        if not last:
            a(f"v_add_u32 v16, {UNR*1024}, v16\nv_add_u32 v17, v17, v18")
    a("s_setprio 3")
    def mid0():
        a.vmwait("c1"); a("s_barrier"); chunk(4); chunk(5)
    def mid1():
        a.vmwait("c2"); a("s_barrier"); chunk(6); chunk(7)
    def mid2():
        a.vmwait_all(); a("s_barrier")
        stamp(a, "att:g2"); stamp(a, "c:att:g2")
        if_wave(a, "lt", 4, lambda: wo_wpre(a))
        a.vmreset()
        if_wave(a, "ge", 4, lambda: w2_wpre(a, W2_VWR_HI))
        a.vmreset()
    group(mid=mid0)
    group(mid=mid1)
    a("s_setprio 2")
    group(mid=mid2)
    a("s_mov_b32 s24, 0")
    ll = a.newlabel("att_loop")
    a.label(ll)
    for val, pr in ((1, 1), (3, 0)):
        l = a.newlabel("pr")
        a(f"s_cmp_lg_u32 s24, {val}\ns_cbranch_scc1 {l}\ns_setprio {pr}")
        a.label(l)
    group()
    a(f"s_add_u32 s24, s24, 1\ns_cmp_lt_u32 s24, 4\ns_cbranch_scc1 {ll}")
    group(last=True)
    a("s_nop 1")
    pv(1, (UNR - 1) & 1, 0); pv(1, (UNR - 1) & 1, 1)
    a("s_setprio 0")
    stamp(a, "att:loop_end"); stamp(a, "c:att:loop_end")
    a("s_nop 7\ns_nop 7")
    a(f"s_mul_i32 s23, s{S_WAVE}, 3072\ns_add_u32 s23, s23, {EXL}\nv_add_u32 v4, s23, v2")
    a(f"s_xor_b32 s24, s{S_WAVE}, 4\ns_mul_i32 s24, s24, 3072\ns_add_u32 s24, s24, {EXL}\nv_add_u32 v5, s24, v2")
    l1 = a.newlabel("ex1"); l2 = a.newlabel("ex2")
    a(f"s_cmp_lg_u32 s16, 0\ns_cbranch_scc1 {l1}")
    for j in range(3): a(f"ds_write_b128 v4, v[{VO[1]+4*j}:{VO[1]+4*j+3}] offset:{j*1024}")
    a(f"s_branch {l2}")
    a.label(l1)
    for j in range(3): a(f"ds_write_b128 v4, v[{VO[0]+4*j}:{VO[0]+4*j+3}] offset:{j*1024}")
    for r in range(12): a(f"v_mov_b32 v{VO[0]+r}, v{VO[1]+r}")
    for r in range(4): a(f"v_mov_b32 v{VQ[0]+r}, v{VQ[1]+r}")
    a.label(l2)
    a("s_waitcnt lgkmcnt(0)\ns_barrier")
    for j in range(3): a(f"ds_read_b128 v[{VS[0]+4*j}:{VS[0]+4*j+3}], v5 offset:{j*1024}")
    a("s_waitcnt lgkmcnt(0)")
    for r in range(9): a(f"v_add_f32 v{VO[0]+r}, v{VO[0]+r}, v{VS[0]+r}")
    lok = a.newlabel("att_ok")
    O = VO[0]
    a(f"v_max3_f32 v4, |v{O}|, |v{O+1}|, |v{O+2}|\nv_max3_f32 v5, |v{O+3}|, |v{O+4}|, |v{O+5}|\nv_max3_f32 v4, |v{O+6}|, |v{O+7}|, v4\nv_max_f32 v4, v4, v5")
    a(f"s_mov_b32 s23, {f2u(2.0**-40):#x}\ns_mov_b32 s24, {f2u(2.0**40):#x}\ns_mov_b32 s25, {f2u(2.0**120):#x}")
    a(f"v_cmp_nge_f32 vcc, v{O+8}, s23")
    a(f"v_cmp_nle_f32 s[26:27], v{O+8}, s24")
    a("s_or_b64 vcc, vcc, s[26:27]")
    a("v_cmp_nle_f32 s[26:27], v4, s25")
    a("s_or_b64 vcc, vcc, s[26:27]")
    lnb = a.newlabel("att_nb")
    a(f"s_cmp_eq_u64 vcc, 0\ns_cbranch_scc1 {lnb}")
    lds_add(a, BADW)
    a.label(lnb)
    a("s_waitcnt lgkmcnt(0)\ns_barrier")
    a(f"v_mov_b32 v4, {BADW}\nds_read_b32 v5, v4\ns_waitcnt lgkmcnt(0)\nv_readfirstlane_b32 s23, v5\ns_nop 0")
    a(f"s_cmp_eq_u32 s23, 0\ns_cbranch_scc1 {lok}")
    a.c("slow path")
    M = VP[1]; C = VS[1]
    a(f"v_mov_b32 v{M}, 0xff800000\nv_mov_b32 v16, v2\ns_mov_b32 s24, 0")
    lp = a.newlabel("sp1")
    a.label(lp)
    rdK(0, 0)
    a("s_waitcnt lgkmcnt(0)")
    qk(0, 0)
    a("s_nop 7\ns_nop 7")
    for r in range(0, 16, 2): a(f"v_max3_f32 v{M}, v{VS[0]+r}, v{VS[0]+r+1}, v{M}")
    a(f"v_add_u32 v16, 1024, v16\ns_add_u32 s24, s24, 1\ns_cmp_lt_u32 s24, 64\ns_cbranch_scc1 {lp}")
    a(f"v_mov_b32 v{M+1}, v{M}\ns_nop 1\nv_permlane32_swap_b32 v{M}, v{M+1}\ns_nop 1\nv_max_f32 v{M}, v{M}, v{M+1}")
    for r in range(16): a(f"v_sub_f32 v{C+r}, 0, v{M}")
    for r in range(16): a(f"v_mov_b32 v{O+r}, 0")
    a("v_mov_b32 v16, v2\ns_mov_b32 s24, 0")
    a(f"v_lshrrev_b32 v{M+2}, 2, v18")
    lp = a.newlabel("sp2")
    a.label(lp)
    rdK(0, 0); rdV(0, 0, reg=19)
    a("s_waitcnt lgkmcnt(0)")
    qk(0, 0, c=f"v[{C}:{C+15}]")
    a("s_nop 7\ns_nop 7")
    ex(0, 0, 16)
    a("s_nop 0")
    cv(0, 0, 8)
    a("s_nop 1")
    pv(0, 0, 0); pv(0, 0, 1)
    a(f"v_add_u32 v16, 1024, v16\nv_add_u32 v19, v19, v{M+2}\ns_add_u32 s24, s24, 1\ns_cmp_lt_u32 s24, 64\ns_cbranch_scc1 {lp}")
    a("s_nop 7\ns_nop 7")
    a.label(lok)
    a(f"v_rcp_f32 v4, v{O+8}\ns_nop 0")
    for r in range(8): a(f"v_mul_f32 v{O+r}, v4, v{O+r}")
    for i in range(4): a(f"v_cvt_pk_bf16_f32 v{VP[0]+i}, v{O+2*i}, v{O+2*i+1}")
    a("s_add_u32 s17, s17, s16\ns_lshl_b32 s17, s17, 15\ns_lshl_b32 s19, s13, 10\ns_add_u32 s17, s17, s19")
    a(f"s_lshl_b32 s19, s{S_L}, 21\ns_add_u32 s17, s17, s19\ns_add_u32 s17, s17, {OF}")
    a.vmop(f"buffer_store_dwordx4 v[{VP[0]}:{VP[0]+3}], v2, s[4:7], s17 offen sc1", "st")
    signal(a, 1, False)
    a.vmreset()


def gen_wo(a):
    a.c("================ WO ================")
    KS = 32
    EX = WO_EX; SY = WO_SY
    gb_roles(a, 13, 14)
    VB = 16; VACC = 80; VWR = WO_VWR; VR = 8
    lend = a.newlabel("wo_end"); lidle = a.newlabel("wo_idle"); lsync = a.newlabel("wo_sync")
    a(f"s_cmp_ge_u32 s{S_WAVE}, 4\ns_cbranch_scc1 {lidle}")
    lds_wait(a, SY + 24, 1)
    stamp(a, "wo:bar1")
    a(f"s_lshr_b32 s20, s{S_WAVE}, 1\ns_lshl_b32 s22, s13, 1\ns_add_u32 s20, s22, s20")
    a(f"s_and_b32 s15, s{S_WAVE}, 1")
    a(f"s_lshl_b32 s21, s14, 1\ns_add_u32 s21, s21, s15")
    a(f"s_lshl_b32 s16, s20, 15\ns_lshl_b32 s17, s15, 14\ns_add_u32 s16, s16, s17\ns_lshl_b32 s17, s{S_L}, 21\ns_add_u32 s16, s16, s17\ns_add_u32 s16, s16, {OF}")
    for s in range(16):
        if s % 4 == 0 and s > 0: a("s_add_u32 s16, s16, 4096")
        a.vmop(f"buffer_load_dwordx4 v[{VB+4*s}:{VB+4*s+3}], v2, s[4:7], s16 offen offset:{(s%4)*1024}", f"k{s}")
    a("s_lshl_b32 s22, s20, 15\ns_lshl_b32 s23, s21, 11\ns_add_u32 s22, s22, s23")
    a(f"s_lshl_b32 s23, s{S_L}, 22\ns_add_u32 s23, s23, s22")
    a.vmop(f"buffer_load_dwordx4 v[{VR}:{VR+3}], v2, s[4:7], s23 offen", "res")
    a.vmop(f"buffer_load_dwordx4 v[{VR+4}:{VR+7}], v2, s[4:7], s23 offen offset:1024", "res")
    for s in range(16):
        a.vmwait(f"k{s}")
        if s == 0: stamp(a, "wo:x0")
        for bi in range(2):
            acc = VACC + bi * 16
            cin = "0" if s == 0 else f"v[{acc}:{acc+15}]"
            a(f"v_mfma_f32_32x32x16_bf16 v[{acc}:{acc+15}], v[{VWR+8*s+4*bi}:{VWR+8*s+4*bi+3}], v[{VB+4*s}:{VB+4*s+3}], {cin}")
    stamp(a, "wo:main_end")
    a(f"s_lshl_b32 s26, s{S_WAVE}, 12\ns_add_u32 s26, s26, {EX}\nv_add_u32 v3, s26, v2")
    a(f"s_xor_b32 s27, s{S_WAVE}, 1\ns_lshl_b32 s30, s27, 12\ns_add_u32 s30, s30, {EX}\nv_add_u32 v6, s30, v2")
    a("s_nop 7\ns_nop 1")
    F = VB
    la = a.newlabel("wo_a"); lb = a.newlabel("wo_b")
    a(f"s_cmp_lg_u32 s15, 0\ns_cbranch_scc1 {la}")
    for q in range(4): a(f"ds_write_b128 v3, v[{VACC+16+4*q}:{VACC+16+4*q+3}] offset:{q*1024}")
    for r in range(0, 16, 2): a(f"v_pk_mov_b32 v[{F+r}:{F+r+1}], v[{VACC+r}:{VACC+r+1}], v[{VACC+r}:{VACC+r+1}] op_sel:[0,1]")
    a(f"s_branch {lb}")
    a.label(la)
    for q in range(4): a(f"ds_write_b128 v3, v[{VACC+4*q}:{VACC+4*q+3}] offset:{q*1024}")
    for r in range(0, 16, 2): a(f"v_pk_mov_b32 v[{F+r}:{F+r+1}], v[{VACC+16+r}:{VACC+16+r+1}], v[{VACC+16+r}:{VACC+16+r+1}] op_sel:[0,1]")
    a.label(lb)
    a("s_waitcnt lgkmcnt(0)")
    a(f"s_lshl_b32 s26, s{S_WAVE}, 2\ns_add_u32 s26, s26, {SY + 8}\nv_mov_b32 v4, s26\nv_mov_b32 v5, 1")
    a("s_mov_b64 exec, 1\nds_write_b32 v4, v5\ns_mov_b64 exec, -1")
    T = VB + 16
    a.vmwait("res")
    for i in range(8):
        a(f"v_lshlrev_b32 v{T+16+2*i}, 16, v{VR+i}\nv_and_b32 v{T+17+2*i}, 0xffff0000, v{VR+i}")
    for r in range(0, 16, 2): a(f"v_pk_add_f32 v[{F+r}:{F+r+1}], v[{F+r}:{F+r+1}], v[{T+16+r}:{T+17+r}]")
    a(f"s_lshl_b32 s27, s27, 2\ns_add_u32 s27, s27, {SY + 8}")
    lds_wait(a, "s27", 1)
    for q in range(4): a(f"ds_read_b128 v[{T+4*q}:{T+4*q+3}], v6 offset:{q*1024}")
    a("s_waitcnt lgkmcnt(0)")
    for r in range(0, 16, 2): a(f"v_pk_add_f32 v[{F+r}:{F+r+1}], v[{F+r}:{F+r+1}], v[{T+r}:{T+r+1}]")
    P = T + 32
    for i in range(8): a(f"v_cvt_pk_bf16_f32 v{P+i}, v{F+2*i}, v{F+2*i+1}")
    a(f"s_lshl_b32 s23, s{S_L}, 22\ns_add_u32 s23, s23, s22\ns_add_u32 s23, s23, {XF[1]}")
    a.vmop(f"buffer_store_dwordx4 v[{P}:{P+3}], v2, s[4:7], s23 offen sc1", "st")
    a.vmop(f"buffer_store_dwordx4 v[{P+4}:{P+7}], v2, s[4:7], s23 offen offset:1024 sc1", "st")
    emit_stats(a, P, 8, P + 8, 21, 20, f"s_lshl_b32 s27, s{S_L}, 20\ns_add_u32 s26, s26, s27\ns_add_u32 s26, s26, {STB + ST_STRIDE}")
    stamp(a, "wo:pre_drain")
    a("s_waitcnt vmcnt(0)")
    stamp(a, "wo:drained")
    lds_add(a, SY + 4)
    a(f"s_branch {lend}")
    a.label(lidle)
    a.vmreset()
    a(f"s_cmp_eq_u32 s{S_WAVE}, {SYNCW}\ns_cbranch_scc1 {lsync}")
    a(f"s_cmp_ge_u32 s{S_I}, 28\ns_cbranch_scc1 {lend}")
    a(f"s_lshr_b32 s30, s{S_I}, 1\ns_mul_i32 s31, s30, {4*32768}\ns_add_u32 s31, s31, {W1F}")
    a(f"s_sub_u32 s32, s{S_WAVE}, 4\ns_mul_i32 s32, s32, {11*4096}\ns_add_u32 s31, s31, s32")
    for g in range(11):
        if g == 10:
            a(f"s_cmp_eq_u32 s{S_WAVE}, 6\ns_cbranch_scc1 {lend}")
        a(f"s_add_u32 m0, s32, {g*4096}\ns_add_u32 s33, s31, {g*4096}")
        for j in range(4):
            a(f"buffer_load_dwordx4 v2, s[4:7], s33 offen offset:{j*1024} lds")
        a(f"s_waitcnt vmcnt({WO_THROTTLE})")
    a(f"s_branch {lend}")
    a.label(lsync)
    a(f"s_lshl_b32 s19, s{S_X}, 5\nv_add_u32 v4, s19, v1")
    phase_id(a, 19, 1)
    poll(a, 32, 19)
    lds_add(a, SY + 24, vtmp=6)
    lds_wait(a, SY + 4, 4)
    flag_store(a, 2, False)
    a.label(lend)
    a.vmreset()

def emit_stats(a, P, n, S, s_g, s_rt, base_txt):
    a(f"v_mov_b32 v{S+4}, 0x3f803f80\nv_mov_b32 v{S}, 0\nv_mov_b32 v{S+1}, 0\ns_nop 0")
    for i in range(n):
        a(f"v_dot2_f32_bf16 v{S}, v{P+i}, v{S+4}, v{S}\nv_dot2_f32_bf16 v{S+1}, v{P+i}, v{P+i}, v{S+1}")
    a(f"v_mov_b32 v{S+2}, v{S}\nv_mov_b32 v{S+3}, v{S+1}\ns_nop 1")
    a(f"v_permlane32_swap_b32 v{S}, v{S+2}\nv_permlane32_swap_b32 v{S+1}, v{S+3}\ns_nop 1")
    a(f"v_add_f32 v{S}, v{S}, v{S+2}\nv_add_f32 v{S+1}, v{S+1}, v{S+3}")
    a(f"s_lshl_b32 s26, s{s_g}, 14\ns_lshl_b32 s27, s{s_rt}, 8\ns_add_u32 s26, s26, s27")
    a(base_txt)
    a(f"v_lshlrev_b32 v{S+5}, 3, v1")
    set_exec(a, 32)
    a.vmop(f"buffer_store_dwordx2 v[{S}:{S+1}], v{S+5}, s[4:7], s26 offen sc1", "st")
    a("s_mov_b64 exec, -1")

W2_KS = 112; W2_KE = 14; W2_VWR = 16; W2_VWR_HI = 136
def w2_wpre(a, W2_VWR=16):
    a(f"s_lshr_b32 s40, s{S_I}, 2")
    a(f"s_mul_i32 s41, s{S_WAVE}, {W2_KE*1024}\ns_mul_i32 s40, s40, {2*W2_KS*1024}\ns_add_u32 s40, s40, s41\ns_add_u32 s40, s40, {W2F}\ns_add_u32 s41, s40, {W2_KS*1024}")
    for s in range(W2_KE):
        if s % 4 == 0 and s > 0: a("s_add_u32 s40, s40, 4096\ns_add_u32 s41, s41, 4096")
        for bi, sb in enumerate((40, 41)):
            a.vmop(f"buffer_load_dwordx4 v[{W2_VWR+8*s+4*bi}:{W2_VWR+8*s+4*bi+3}], v2, s[4:7], s{sb} offen offset:{(s%4)*1024}", "w2w")

def gen_w2(a):
    a.c("================ W2 ================")
    KS = W2_KS; KE = W2_KE; VWR = W2_VWR
    EX = 98304
    gb_roles(a, 13, 14)
    D = 7; VR = 8
    def do_poll():
        a(f"s_bfe_u32 s19, s{S_I}, 0x10001\ns_lshl_b32 s23, s{S_X}, 5\ns_add_u32 s19, s19, s23\nv_lshlrev_b32 v4, 1, v1\nv_add_u32 v4, s19, v4")
        phase_id(a, 20, 3)
        a("s_mov_b32 s28, s20")
        poll(a, 14, 28)
    if_wave(a, "eq", SYNCW, do_poll)
    stamp(a, "w2:polled")
    a("s_barrier")
    stamp(a, "w2:bar1")
    a.vmreset()
    a(f"s_mul_i32 s15, s{S_WAVE}, {KE*1024}")
    a(f"s_mul_i32 s16, s13, {2*KS*1024}\ns_add_u32 s16, s16, s15\ns_lshl_b32 s17, s{S_L}, 23\ns_add_u32 s16, s16, s17\ns_add_u32 s16, s16, {HF}\ns_add_u32 s17, s16, {KS*1024}")
    a(f"s_mov_b32 s44, s4\ns_mov_b32 s45, s5\ns_mov_b32 s47, 0x00020000\ns_cmp_eq_u32 s{S_L}, 0\ns_cselect_b32 s46, {WS_SIZE}, 0")
    a(f"s_lshr_b32 s30, s{S_I}, 1\ns_mul_i32 s31, s30, {3*32768}\ns_add_u32 s31, s31, {WQF}\ns_lshl_b32 s32, s{S_WAVE}, 12\ns_add_u32 s31, s31, s32")
    def qpf(n):
        t, j = n // 4, n % 4
        a(f"s_add_u32 m0, s32, {t*32768}\ns_add_u32 s33, s31, {t*32768}")
        a.vmop(f"buffer_load_dwordx4 v2, s[44:47], s33 offen offset:{j*1024} lds", "qpf")
    MAP = {True: dict(W=16, X=128, A=184), False: dict(W=136, X=80, A=16)}
    ACC_CANON = 184
    def main_path2(low):
        VW_, VB, VACC = MAP[low]["W"], MAP[low]["X"], MAP[low]["A"]
        def xload(s):
            b = VB + (s % D) * 8
            if s % 4 == 0 and s > 0: a("s_add_u32 s16, s16, 4096\ns_add_u32 s17, s17, 4096")
            for ai, sb in enumerate((16, 17)):
                a.vmop(f"buffer_load_dwordx4 v[{b+4*ai}:{b+4*ai+3}], v2, s[4:7], s{sb} offen offset:{(s%4)*1024}", f"k{s}")
        for s in range(2): xload(s)
        if low: w2_wpre(a, VW_)
        for s in range(2, 4 if not low else D): xload(s)
        nx = [4 if not low else D]
        a(f"s_lshr_b32 s20, s{S_WAVE}, 2\ns_lshl_b32 s22, s13, 1\ns_add_u32 s20, s22, s20")
        a(f"s_and_b32 s21, s{S_WAVE}, 3\ns_lshl_b32 s22, s14, 2\ns_add_u32 s21, s22, s21")
        a("s_lshl_b32 s22, s20, 15\ns_lshl_b32 s23, s21, 10\ns_add_u32 s22, s22, s23")
        a(f"s_lshl_b32 s23, s{S_L}, 22\ns_add_u32 s23, s23, s22\ns_add_u32 s23, s23, {XF[1]}")
        for s in range(KE):
            if low and s == 0: a.vmwait(["k0", "k1", "w2w"])
            else: a.vmwait(f"k{s}")
            if s == 0: stamp(a, "w2:x0")
            b = VB + (s % D) * 8
            for ai in range(2):
                for bi in range(2):
                    acc = VACC + (ai * 2 + bi) * 16
                    cin = "0" if s == 0 else f"v[{acc}:{acc+15}]"
                    a(f"v_mfma_f32_32x32x16_bf16 v[{acc}:{acc+15}], v[{VW_+8*s+4*bi}:{VW_+8*s+4*bi+3}], v[{b+4*ai}:{b+4*ai+3}], {cin}")
            lim = min(KE - 1, s + D, 2 * s + 5 if not low else 99)
            while nx[0] <= lim:
                xload(nx[0]); nx[0] += 1
            if s == KE - 8: a.vmop(f"buffer_load_dwordx4 v[{VR}:{VR+3}], v2, s[4:7], s23 offen", "res")
            if s >= KE - 7:
                for n in range(2 * (s - (KE - 7)), min(12, 2 * (s - (KE - 7)) + 2)): qpf(n)
        a.vmwait("res")
    a(f"s_cmp_ge_u32 s{S_WAVE}, 4\ns_cbranch_scc1 L_w2_hi")
    saved = list(a.vm)
    main_path2(True)
    a("s_branch L_w2_join")
    a.label("L_w2_hi")
    a.vm = saved
    main_path2(False)
    a.label("L_w2_join")
    VACC = ACC_CANON
    a.vmreset()
    stamp(a, "w2:main_end")
    a("s_nop 7\ns_nop 3")
    H = lambda d: VACC + d * 8
    T = VWR
    K = VWR + 32
    a(f"s_lshl_b32 s26, s{S_WAVE}, 13\ns_add_u32 s26, s26, {EX}\nv_add_u32 v3, s26, v2")
    a(f"s_xor_b32 s27, s{S_WAVE}, 4\ns_lshl_b32 s27, s27, 13\ns_add_u32 s27, s27, {EX}\nv_add_u32 v4, s27, v2")
    la = a.newlabel("x1a"); lb = a.newlabel("x1b")
    a(f"s_and_b32 s28, s{S_WAVE}, 4\ns_cmp_lg_u32 s28, 0\ns_cbranch_scc1 {la}")
    for q in range(8): a(f"ds_write_b128 v3, v[{H(4)+4*q}:{H(4)+4*q+3}] offset:{q*1024}")
    for r in range(32): a(f"v_mov_b32 v{K+r}, v{H(0)+r}")
    a(f"s_branch {lb}")
    a.label(la)
    assert K == MAP[False]["A"] + 32
    for q in range(8): a(f"ds_write_b128 v3, v[{MAP[False]['A']+4*q}:{MAP[False]['A']+4*q+3}] offset:{q*1024}")
    a.label(lb)
    a("s_waitcnt lgkmcnt(0)\ns_barrier")
    for q in range(8): a(f"ds_read_b128 v[{T+4*q}:{T+4*q+3}], v4 offset:{q*1024}")
    a("s_waitcnt lgkmcnt(0)")
    for r in range(0, 32, 2): a(f"v_pk_add_f32 v[{K+r}:{K+r+1}], v[{K+r}:{K+r+1}], v[{T+r}:{T+r+1}]")
    a(f"s_xor_b32 s27, s{S_WAVE}, 6\ns_lshl_b32 s27, s27, 13\ns_add_u32 s27, s27, {EX}\nv_add_u32 v5, s27, v2")
    la = a.newlabel("x2a"); lb = a.newlabel("x2b")
    K2 = VACC
    a(f"s_and_b32 s28, s{S_WAVE}, 2\ns_cmp_lg_u32 s28, 0\ns_cbranch_scc1 {la}")
    for q in range(4): a(f"ds_write_b128 v4, v[{K+16+4*q}:{K+16+4*q+3}] offset:{q*1024}")
    for r in range(16): a(f"v_mov_b32 v{K2+r}, v{K+r}")
    a(f"s_branch {lb}")
    a.label(la)
    for q in range(4): a(f"ds_write_b128 v4, v[{K+4*q}:{K+4*q+3}] offset:{q*1024}")
    for r in range(16): a(f"v_mov_b32 v{K2+r}, v{K+16+r}")
    a.label(lb)
    a("s_waitcnt lgkmcnt(0)\ns_barrier")
    for q in range(4): a(f"ds_read_b128 v[{T+4*q}:{T+4*q+3}], v5 offset:{q*1024}")
    a("s_waitcnt lgkmcnt(0)")
    for r in range(0, 16, 2): a(f"v_pk_add_f32 v[{K2+r}:{K2+r+1}], v[{K2+r}:{K2+r+1}], v[{T+r}:{T+r+1}]")
    a(f"s_xor_b32 s27, s{S_WAVE}, 7\ns_lshl_b32 s27, s27, 13\ns_add_u32 s27, s27, {EX}\nv_add_u32 v4, s27, v2")
    la = a.newlabel("x3a"); lb = a.newlabel("x3b")
    F = VACC + 16
    a(f"s_and_b32 s28, s{S_WAVE}, 1\ns_cmp_lg_u32 s28, 0\ns_cbranch_scc1 {la}")
    for q in range(2): a(f"ds_write_b128 v5, v[{K2+8+4*q}:{K2+8+4*q+3}] offset:{q*1024}")
    for r in range(8): a(f"v_mov_b32 v{F+r}, v{K2+r}")
    a(f"s_branch {lb}")
    a.label(la)
    for q in range(2): a(f"ds_write_b128 v5, v[{K2+4*q}:{K2+4*q+3}] offset:{q*1024}")
    for r in range(8): a(f"v_mov_b32 v{F+r}, v{K2+8+r}")
    a.label(lb)
    a("s_waitcnt lgkmcnt(0)\ns_barrier")
    for q in range(2): a(f"ds_read_b128 v[{T+4*q}:{T+4*q+3}], v4 offset:{q*1024}")
    for i in range(4):
        a(f"v_lshlrev_b32 v{T+8+2*i}, 16, v{VR+i}\nv_and_b32 v{T+9+2*i}, 0xffff0000, v{VR+i}")
    for r in range(0, 8, 2): a(f"v_pk_add_f32 v[{F+r}:{F+r+1}], v[{F+r}:{F+r+1}], v[{T+8+r}:{T+9+r}]")
    a("s_waitcnt lgkmcnt(0)")
    for r in range(0, 8, 2): a(f"v_pk_add_f32 v[{F+r}:{F+r+1}], v[{F+r}:{F+r+1}], v[{T+r}:{T+r+1}]")
    P = T + 16
    for i in range(4): a(f"v_cvt_pk_bf16_f32 v{P+i}, v{F+2*i}, v{F+2*i+1}")
    lfin = a.newlabel("w2_fin"); lend = a.newlabel("w2_end")
    a(f"s_cmp_lg_u32 s{S_L}, 0\ns_cbranch_scc1 {lfin}")
    a(f"s_add_u32 s23, s22, {XF[2]}")
    a(f"buffer_store_dwordx4 v[{P}:{P+3}], v2, s[4:7], s23 offen sc1")
    emit_stats(a, P, 4, P + 4, 21, 20, f"s_add_u32 s26, s26, {STB + 2*ST_STRIDE}")
    signal(a, 4, False)
    a(f"s_branch {lend}")
    a.label(lfin)
    a("s_load_dwordx2 s[24:25], s[0:1], 48\ns_waitcnt lgkmcnt(0)")
    a(f"s_and_b32 s25, s25, 0xffff\ns_mov_b32 s26, {2048*512*2}\ns_mov_b32 s27, 0x00020000")
    a(f"v_permlane32_swap_b32 v{P}, v{P+2}\nv_permlane32_swap_b32 v{P+1}, v{P+3}")
    Tt = P + 4
    a(f"v_and_b32 v{Tt}, 31, v1\nv_lshlrev_b32 v{Tt}, 10, v{Tt}\nv_lshrrev_b32 v{Tt+1}, 5, v1\nv_lshl_add_u32 v{Tt}, v{Tt+1}, 4, v{Tt}")
    a("s_lshl_b32 s28, s20, 15\ns_lshl_b32 s29, s21, 5\ns_add_u32 s28, s28, s29")
    a(f"buffer_store_dwordx4 v[{P}:{P+3}], v{Tt}, s[24:27], s28 offen sc1")
    a.label(lend)
    a.vmreset()

def build():
    a = Asm()
    a.lines.append(f".globl {NAME}\n.p2align 8\n.type {NAME},@function")
    a.label(NAME)
    a(f"s_cmp_ge_u32 s2, 256\ns_cbranch_scc1 L_end")
    a("s_load_dwordx2 s[4:5], s[0:1], 64")
    a("s_load_dwordx2 s[16:17], s[0:1], 56")
    a("v_and_b32 v1, 63, v0\nv_lshrrev_b32 v2, 6, v0\ns_nop 0")
    a(f"v_readfirstlane_b32 s{S_WAVE}, v2")
    a("v_lshlrev_b32 v2, 4, v1")
    a(f"s_mov_b32 s{S_L}, 0\ns_mov_b32 s{S_MODE}, 0\ns_mov_b32 s{S_NONCE}, 0\ns_mov_b32 s{S_X}, 0\ns_mov_b32 s{S_I}, 0\ns_mov_b32 s{S_ROLE}, 0")
    if PROF: a("v_mov_b32 v254, 0\nv_mov_b32 v255, 0")
    a("s_waitcnt lgkmcnt(0)")
    a(f"s_and_b32 s5, s5, 0xffff\ns_mov_b32 s6, {WS_SIZE}\ns_mov_b32 s7, 0x00020000")
    def startup():
        a("s_and_b32 s17, s17, 0xffff\ns_mov_b32 s18, 256\ns_mov_b32 s19, 0x00020000")
        a("s_getreg_b32 s20, hwreg(HW_REG_XCC_ID, 0, 4)")
        a("s_and_b32 s21, s20, 7\ns_lshl_b32 s21, s21, 4\ns_add_u32 s21, s21, 16")
        a("v_mov_b32 v60, 1\nv_mov_b32 v6, s21")
        a("s_mov_b64 exec, 1")
        a("buffer_atomic_add v60, v6, s[16:19], 0 offen sc0 sc1")
        l = a.newlabel("nonce")
        a(f"s_cmp_lg_u32 s{S_WG}, 0\ns_cbranch_scc1 {l}")
        a("s_memrealtime s[22:23]\ns_waitcnt lgkmcnt(0)")
        a("s_lshl_b32 s22, s22, 8\ns_or_b32 s22, s22, 0x80000000")
        a("v_mov_b32 v4, s22\nv_mov_b32 v5, 0")
        a("buffer_store_dword v4, v5, s[16:19], 0 offen sc1")
        a.label(l)
        a("s_mov_b64 exec, -1")
        a("s_lshl_b32 s37, s20, 8")
    if_wave(a, "eq", SYNCW, startup)
    if PRETOUCH:
        def pre():
            a("v_lshlrev_b32 v62, 21, v1")
            set_exec(a, 28)
            a("buffer_load_dword v63, v62, s[4:7], 0 offen")
            a("s_mov_b64 exec, -1")
        if_wave(a, "eq", 5, pre)
    stamp(a, "start")
    gen_prep(a)
    a.label("L_layer")
    gen_ga(a, "qkv")
    gen_att(a)
    gen_wo(a)
    gen_ga(a, "w1")
    gen_w2(a)
    a(f"s_add_u32 s{S_L}, s{S_L}, 1\ns_cmp_lt_u32 s{S_L}, 2\ns_cbranch_scc1 L_layer")
    if PROF:
        a(f"s_mov_b32 s{S_L}, 1")
        stamp(a, "end")
        a(f"s_lshl_b32 s66, s{S_WG}, 12\ns_lshl_b32 s67, s{S_WAVE}, 9\ns_add_u32 s66, s66, s67\ns_add_u32 s66, s66, {PROF_WS}")
        a("v_lshlrev_b32 v250, 2, v1")
        a("buffer_store_dword v254, v250, s[4:7], s66 offen")
        a("buffer_store_dword v255, v250, s[4:7], s66 offen offset:256")
    a.label("L_end")
    a("s_endpgm")
    hdr = open("header.txt").read()
    s = hdr + "; @launch grid=(256,1,1) block=(512,1,1) lds=163840\n"
    s += '.amdgcn_target "amdgcn-amd-amdhsa--gfx950"\n.text\n' + a.text()
    s += f""".section .rodata,"a"
.p2align 6
.amdhsa_kernel {NAME}
  .amdhsa_next_free_vgpr 256
  .amdhsa_next_free_sgpr 96
  .amdhsa_accum_offset 256
  .amdhsa_group_segment_fixed_size 0
  .amdhsa_kernarg_size 72
  .amdhsa_user_sgpr_count 2
  .amdhsa_user_sgpr_kernarg_segment_ptr 1
  .amdhsa_system_sgpr_workgroup_id_x 1
  .amdhsa_float_denorm_mode_32 3
.end_amdhsa_kernel
"""
    return s

if __name__ == "__main__":
    out = sys.argv[1] if len(sys.argv) > 1 else "mega.s"
    if "--prof" in sys.argv: PROF = True
    if "--global" in sys.argv: FORCE_GLOBAL = True
    if "--pretouch" in sys.argv: PRETOUCH = True
    open(out, "w").write(build())
    if PROF: json.dump(STAMPS, open("stamps.json", "w"))
```
